```python
import torch

def _softmax(x, axis=-1):
    return torch.softmax(x, dim=axis)
def _gelu(x):
    return torch.nn.functional.gelu(x, approximate="tanh")
def _silu(x):
    return torch.nn.functional.silu(x)
def _sigmoid(x):
    return torch.sigmoid(x)
def _layernorm(x, axis=-1, eps=1e-5):
    m = x.mean(dim=axis, keepdim=True)
    v = x.var(dim=axis, keepdim=True, unbiased=False)
    return (x - m) / torch.sqrt(v + eps)
def _scatter_add(tgt, idx, src, axis=0):
    return tgt.clone().index_add_(axis, idx, src)
def _segment_sum(src, seg, n):
    out = torch.zeros((n,) + src.shape[1:], dtype=src.dtype)
    return out.index_add_(0, seg, src)
def _pad(x, pw):
    flat = tuple(v for pair in reversed(pw) for v in pair)
    return torch.nn.functional.pad(x, flat)

kernel_name = 'standalone__softmax_full_bidir__decode'

def setup_inputs():

    _w = (lambda a: (lambda t: t.to(torch.bfloat16) if t.is_floating_point() else t)(torch.as_tensor(a)))
    B, H, Sq, Skv, Dh = 4, 32, 1, 4096, 192
    return {
        "q": _w((lambda *s: torch.randn(*s, dtype=torch.bfloat16) * 0.8)(B, H, Sq, Dh)),
        "k": _w((lambda *s: torch.randn(*s, dtype=torch.bfloat16) * 0.8)(B, H, Skv, Dh)),
        "v": _w((lambda *s: torch.randn(*s, dtype=torch.bfloat16) * 0.05)(B, H, Skv, Dh)),
    }

def reference(q, k, v):
    scale = q.shape[-1] ** -0.5
    scores = torch.einsum('bhqd,bhkd->bhqk', q, k) * scale
    attn = _softmax(scores, axis=-1)
    return torch.einsum('bhqk,bhkd->bhqd', attn, v)
```

```python
import sys, math

KNAME = "standalone__softmax_full_bidir__decode_kernel"
HEADER = """; Kernarg layout for this problem (48 bytes, ptrs only, base s[0:1]):
"""
TENSOR_BYTES = 128 * 4096 * 384
TILE = 6144
CSCALE = (192 ** -0.5) * math.log2(math.e)

import struct
def f2u(x):
    return struct.unpack("<I", struct.pack("<f", x))[0]

class E:
    def __init__(self):
        self.o = []
    def __call__(self, s):
        self.o.append("  " + s)
    def label(self, s):
        self.o.append(s + ":")
    def c(self, s):
        self.o.append("  ; " + s)
    def text(self):
        return "\n".join(self.o) + "\n"

def gen(nw=4, depth=2, pol="nt", stamp=False, nsplit=2):
    nwg = 128 * nsplit
    chunk = TENSOR_BYTES // nwg
    ntile = chunk // TILE // nw
    e = E()
    vLane = 0
    vKo1, vKo2, vVo1, vVo2 = 1, 2, 3, 4
    vM, vMc, vL = 5, 6, 7
    vT0, vT1, vT2, vT3 = 8, 9, 10, 11
    vMask = 12
    vQ1, vQ2a, vQ2b = 16, 20, 24
    vAcc0, vAcc1 = 28, 32
    vD = 36
    vS = 52
    vP = 56
    vA0, vA1 = 64, 68
    vBuf = 72
    nvgpr = vBuf + 48 * depth
    def Kb(d, t): r = vBuf + 48*d + 4*t; return r
    def Vb(d, t): r = vBuf + 48*d + 24 + 4*t; return r
    def R4(r): return f"v[{r}:{r+3}]"
    sK, sV, sQ = 16, 20, 24
    sOff = 28
    sCnt = 29
    sC = 30
    sWave = 31
    sLo8 = 32
    sTmp = 34
    sH = 36
    LSTRIDE = 1088
    e.o.append("; @launch grid=(%d,1,1) block=(%d,1,1) lds=%d" % (nwg, nw*64, LSTRIDE*nw))
    e.o.append('.amdgcn_target "amdgcn-amd-amdhsa--gfx950"')
    e.o.append(".text")
    e.o.append(f".globl {KNAME}")
    e.o.append(".p2align 8")
    e.o.append(f".type {KNAME},@function")
    e.label(KNAME)
    e(f"s_cmp_ge_u32 s2, {nwg}")
    e("s_cbranch_scc1 L_end")
    e("s_load_dwordx8 s[4:11], s[0:1], 0")
    e("s_load_dwordx4 s[12:15], s[0:1], 32")
    if stamp:
        e("s_memrealtime s[40:41]")
    e(f"v_lshrrev_b32 v{vT0}, 6, v0")
    e(f"v_and_b32 v{vLane}, 63, v0")
    e(f"v_readfirstlane_b32 s{sWave}, v{vT0}")
    e(f"v_and_b32 v{vT0}, 15, v{vLane}")
    e(f"v_lshrrev_b32 v{vT1}, 4, v{vLane}")
    e(f"v_lshrrev_b32 v{vT2}, 2, v{vT0}")
    e(f"v_mul_u32_u24 v{vT2}, 1536, v{vT2}")
    e(f"v_and_b32 v{vT3}, 3, v{vLane}")
    e(f"v_lshl_add_u32 v{vT2}, v{vT3}, 4, v{vT2}")
    e(f"v_lshl_add_u32 v{vKo1}, v{vT1}, 6, v{vT2}")
    e(f"v_lshrrev_b32 v{vKo2}, 1, v{vT1}")
    e(f"v_mul_u32_u24 v{vKo2}, 384, v{vKo2}")
    e(f"v_add_u32 v{vKo2}, v{vKo2}, v{vT2}")
    e(f"v_and_b32 v{vT2}, 1, v{vT1}")
    e(f"v_lshl_add_u32 v{vKo2}, v{vT2}, 6, v{vKo2}")
    e(f"v_add_u32 v{vKo2}, 256, v{vKo2}")
    e(f"v_mul_u32_u24 v{vT2}, 1536, v{vT1}")
    e(f"v_lshl_add_u32 v{vVo1}, v{vT0}, 4, v{vT2}")
    e(f"v_lshrrev_b32 v{vVo2}, 3, v{vT0}")
    e(f"v_mul_u32_u24 v{vVo2}, 384, v{vVo2}")
    e(f"v_add_u32 v{vVo2}, v{vVo2}, v{vT2}")
    e(f"v_and_b32 v{vT2}, 7, v{vLane}")
    e(f"v_lshl_add_u32 v{vVo2}, v{vT2}, 4, v{vVo2}")
    e(f"v_add_u32 v{vVo2}, 256, v{vVo2}")
    e(f"v_lshlrev_b32 v{vT2}, 4, v{vT3}")
    e(f"v_lshl_add_u32 v{vD}, v{vT1}, 6, v{vT2}")
    e(f"v_and_b32 v{vD+1}, 1, v{vT1}")
    e(f"v_lshl_add_u32 v{vD+1}, v{vD+1}, 6, v{vT2}")
    e(f"v_add_u32 v{vD+1}, 256, v{vD+1}")
    e(f"v_mov_b32 v{vD+2}, 0x40000000")
    e(f"v_cmp_gt_u32 vcc, 32, v{vLane}")
    e("s_nop 1")
    e(f"v_cndmask_b32 v{vD+3}, v{vD+2}, v{vD+1}, vcc")
    e(f"v_cndmask_b32 v{vD+2}, v{vD+1}, v{vD+2}, vcc")
    e("s_waitcnt lgkmcnt(0)")
    for (sr, p) in ((sK, 6), (sV, 8)):
        e(f"s_mov_b32 s{sr}, s{p}")
        e(f"s_and_b32 s{sr+1}, s{p+1}, 0xffff")
        e(f"s_mov_b32 s{sr+2}, {TENSOR_BYTES}")
        e(f"s_mov_b32 s{sr+3}, 0x20000")
    e(f"s_mul_i32 s{sOff}, s2, {chunk}")
    e(f"s_mul_i32 s{sTmp}, s{sWave}, {TILE}")
    e(f"s_add_u32 s{sOff}, s{sOff}, s{sTmp}")
    def issueK(d):
        for R in range(4):
            e(f"buffer_load_dwordx4 {R4(Kb(d,R))}, v{vKo1}, s[{sK}:{sK+3}], s{sOff} offen offset:{R*384} {pol}")
        for u in range(2):
            e(f"buffer_load_dwordx4 {R4(Kb(d,4+u))}, v{vKo2}, s[{sK}:{sK+3}], s{sOff} offen offset:{u*768} {pol}")
    def issueV(d):
        for r in range(4):
            e(f"buffer_load_dwordx4 {R4(Vb(d,r))}, v{vVo1}, s[{sV}:{sV+3}], s{sOff} offen offset:{r*384} {pol}")
        for u in range(2):
            e(f"buffer_load_dwordx4 {R4(Vb(d,4+u))}, v{vVo2}, s[{sV}:{sV+3}], s{sOff} offen offset:{u*768} {pol}")
    step = TILE * nw
    issueK(0)
    lg = int(math.log2(nsplit))
    e(f"s_lshr_b32 s{sH}, s2, {lg}")
    e(f"s_mul_i32 s{sTmp}, s{sH}, 384")
    e(f"s_add_u32 s{sQ}, s4, s{sTmp}")
    e(f"s_addc_u32 s{sQ+1}, s5, 0")
    e(f"s_and_b32 s{sQ+1}, s{sQ+1}, 0xffff")
    e(f"s_mov_b32 s{sQ+2}, 384")
    e(f"s_mov_b32 s{sQ+3}, 0x20000")
    e(f"buffer_load_dwordx4 {R4(vQ1)}, v{vD}, s[{sQ}:{sQ+3}], 0 offen")
    e(f"buffer_load_dwordx4 {R4(vQ2a)}, v{vD+3}, s[{sQ}:{sQ+3}], 0 offen")
    e(f"buffer_load_dwordx4 {R4(vQ2b)}, v{vD+2}, s[{sQ}:{sQ+3}], 0 offen")
    issueV(0)
    e(f"s_add_u32 s{sOff}, s{sOff}, {step}")
    for d in range(1, depth):
        issueK(d); issueV(d)
        e(f"s_add_u32 s{sOff}, s{sOff}, {step}")
    e(f"s_mov_b32 s{sC}, {f2u(CSCALE):#x}")
    e(f"v_mov_b32 v{vM}, 0xff7fffff")
    e(f"v_mov_b32 v{vMc}, 0xff7fffff")
    e(f"v_mov_b32 v{vL}, 0")
    for r in range(8):
        e(f"v_mov_b32 v{vAcc0+r}, 0")
    e(f"v_and_b32 v{vT2}, 1, v{vLane}")
    e(f"v_lshlrev_b32 v{vT2}, 4, v{vT2}")
    e(f"v_mov_b32 v{vT3}, 0xffff")
    e(f"v_lshlrev_b32 v{vT2}, v{vT2}, v{vT3}")
    e(f"v_bfe_u32 v{vT3}, v{vLane}, 1, 2")
    for k in range(4):
        e(f"v_cmp_eq_u32 vcc, {k}, v{vT3}")
        e("s_nop 1")
        e(f"v_cndmask_b32 v{vMask+k}, 0, v{vT2}, vcc")
    e(f"v_cmp_gt_u32 s[{sLo8}:{sLo8+1}], 8, v{vT0}")
    nld = 6
    rare_blocks = []
    def tile(d, wK, wV, do_issue, tag):
        e(f"s_waitcnt vmcnt({wK})")
        D = [vD + 4*R for R in range(4)]
        for R in range(4):
            e(f"v_mfma_f32_16x16x32_bf16 {R4(D[R])}, {R4(Kb(d,R))}, {R4(vQ1)}, 0")
        for R in range(4):
            q2 = vQ2a if (R & 1) == 0 else vQ2b
            e(f"v_mfma_f32_16x16x32_bf16 {R4(D[R])}, {R4(Kb(d,4+(R>>1)))}, {R4(q2)}, {R4(D[R])}")
        if do_issue:
            issueK(d)
            e("s_nop 1")
        else:
            e("s_nop 7")
        for b in range(4):
            for R in range(4):
                qp = f"quad_perm:[{b},{b},{b},{b}] row_mask:0xf bank_mask:0xf"
                if b == 0:
                    e(f"v_mov_b32_dpp v{vS+R}, v{D[R]} {qp}")
                else:
                    e(f"v_add_f32_dpp v{vS+R}, v{D[R]+b}, v{vS+R} {qp}")
        e(f"v_max3_f32 v{vT0}, v{vS}, v{vS+1}, v{vS+2}")
        e(f"v_max_f32 v{vT0}, v{vT0}, v{vS+3}")
        e(f"v_cmp_gt_f32 vcc, v{vT0}, v{vM}")
        e(f"s_cbranch_vccnz L_rare_{tag}")
        e.label(f"L_back_{tag}")
        rare_blocks.append(tag)
        for r in range(4):
            e(f"v_fma_f32 v{vS+r}, v{vS+r}, s{sC}, -v{vMc}")
        for r in range(4):
            e(f"v_exp_f32 v{vS+r}, v{vS+r}")
        e("s_nop 0")
        for r in range(4):
            e(f"v_cvt_pk_bf16_f32 v{vP+r}, v{vS+r}, v{vS+r}")
        e(f"v_add_f32 v{vT0}, v{vS}, v{vS+1}")
        e(f"v_add_f32 v{vT1}, v{vS+2}, v{vS+3}")
        e(f"v_cndmask_b32 v{vP+4}, v{vP+1}, v{vP}, s[{sLo8}:{sLo8+1}]")
        e(f"v_cndmask_b32 v{vP+5}, v{vP+3}, v{vP+2}, s[{sLo8}:{sLo8+1}]")
        e(f"v_add_f32 v{vT0}, v{vT0}, v{vT1}")
        e(f"v_add_f32 v{vL}, v{vL}, v{vT0}")
        seq = [(0, vAcc0, 0), (1, vAcc0, 1), (2, vAcc0, 2), (3, vAcc0, 3), (4, vAcc1, 4), (5, vAcc1, 5)]
        abuf = [vA0, vA1]
        def mkA(n):
            p, acc, vt = seq[n]
            for k in range(4):
                e(f"v_and_b32 v{abuf[n&1]+k}, v{vP+p}, v{vMask+k}")
        mkA(0)
        for n in range(6):
            if n + 1 < 6:
                mkA(n + 1)
            else:
                e("s_nop 1")
            if n == 0:
                e(f"s_waitcnt vmcnt({wV})")
            p, acc, vt = seq[n]
            e(f"v_mfma_f32_16x16x32_bf16 {R4(acc)}, {R4(abuf[n&1])}, {R4(Vb(d,vt))}, {R4(acc)}")
        if do_issue:
            issueV(d)
            e(f"s_add_u32 s{sOff}, s{sOff}, {step}")
    nmain = ntile - depth
    wfull = nld * (2*depth - 1)
    e(f"s_waitcnt vmcnt({6 + 12*(depth-1)})")
    if nmain > 0:
        assert nmain % depth == 0, (nmain, depth)
        e(f"s_mov_b32 s{sCnt}, {nmain // depth}")
        e.label("L_loop")
        for d in range(depth):
            tile(d, wfull, wfull, True, f"m{d}")
        e(f"s_sub_u32 s{sCnt}, s{sCnt}, 1")
        e(f"s_cmp_lg_u32 s{sCnt}, 0")
        e("s_cbranch_scc1 L_loop")
    for x in range(depth):
        d = x
        rem = depth - 1 - x
        wK = nld * (2*rem + 1)
        wV = nld * (2*rem)
        tile(d, wK, wV, False, f"e{x}")
    if stamp:
        e("s_memrealtime s[42:43]")
    e.c("reduce l across groups")
    e(f"v_mov_b32 v{vT0}, v{vL}")
    e("s_nop 1")
    e(f"v_permlane32_swap_b32 v{vL}, v{vT0}")
    e(f"v_add_f32 v{vL}, v{vL}, v{vT0}")
    e(f"v_mov_b32 v{vT0}, v{vL}")
    e("s_nop 1")
    e(f"v_permlane16_swap_b32 v{vL}, v{vT0}")
    e(f"v_add_f32 v{vL}, v{vL}, v{vT0}")
    e(f"s_mul_i32 s{sTmp}, s{sWave}, {LSTRIDE}")
    e(f"v_and_b32 v{vT0}, 15, v{vLane}")
    e(f"v_lshrrev_b32 v{vT1}, 4, v{vLane}")
    e(f"v_lshlrev_b32 v{vT2}, 5, v{vT0}")
    e(f"v_lshl_add_u32 v{vT2}, v{vT1}, 4, v{vT2}")
    e(f"v_add_u32 v{vT2}, s{sTmp}, v{vT2}")
    e(f"v_lshrrev_b32 v{vT3}, 3, v{vT0}")
    e(f"v_lshlrev_b32 v{vT3}, 8, v{vT3}")
    e(f"v_and_b32 v{vT0}, 7, v{vT0}")
    e(f"v_lshl_add_u32 v{vT3}, v{vT0}, 5, v{vT3}")
    e(f"v_and_b32 v{vT1}, 1, v{vT1}")
    e(f"v_lshl_add_u32 v{vT3}, v{vT1}, 4, v{vT3}")
    e(f"v_add_u32 v{vT3}, s{sTmp}, v{vT3}")
    e(f"v_add_u32 v{vT3}, 512, v{vT3}")
    e(f"v_mov_b32 v{vT0}, s{sTmp}")
    e(f"v_mov_b32 v{vS}, v{vM}")
    e(f"v_mov_b32 v{vS+1}, v{vL}")
    e("s_nop 7")
    e("s_mov_b32 exec_lo, -1")
    e("s_mov_b32 exec_hi, 0")
    e(f"ds_write_b128 v{vT2}, {R4(vAcc0)}")
    e("s_mov_b32 exec_lo, 0x00ff00ff")
    e("s_mov_b32 exec_hi, 0xff00ff00")
    e(f"ds_write_b128 v{vT3}, {R4(vAcc1)}")
    e("s_mov_b64 exec, 1")
    e(f"ds_write_b64 v{vT0}, v[{vS}:{vS+1}] offset:1024")
    e("s_mov_b64 exec, -1")
    e("s_waitcnt lgkmcnt(0)")
    e("s_barrier")
    e(f"s_cmp_lg_u32 s{sWave}, 0")
    e("s_cbranch_scc1 L_end")
    vX = vBuf
    e(f"v_lshlrev_b32 v{vT0}, 4, v{vLane}")
    e(f"v_mov_b32 v{vT1}, 0")
    for w in range(nw):
        e(f"ds_read_b128 {R4(vX+12*w)}, v{vT0} offset:{w*LSTRIDE}")
        e(f"ds_read_b128 {R4(vX+12*w+4)}, v{vT0} offset:{w*LSTRIDE+256}")
        e(f"ds_read_b64 v[{vX+12*w+8}:{vX+12*w+9}], v{vT1} offset:{w*LSTRIDE+1024}")
        if w % 4 == 3:
            e("s_waitcnt lgkmcnt(0)")
    e("s_waitcnt lgkmcnt(0)")
    e(f"v_cmp_le_u32 vcc, 32, v{vLane}")
    e(f"v_mov_b32 v{vM}, v{vX+8}")
    for w in range(1, nw):
        e(f"v_max_f32 v{vM}, v{vM}, v{vX+12*w+8}")
    e(f"v_mul_f32 v{vMc}, s{sC}, v{vM}")
    e(f"v_mov_b32 v{vL}, 0")
    for r in range(4):
        e(f"v_mov_b32 v{vAcc0+r}, 0")
    for w in range(nw):
        b = vX + 12*w
        e(f"v_fma_f32 v{vT0}, v{b+8}, s{sC}, -v{vMc}")
        e(f"v_exp_f32 v{vT0}, v{vT0}")
        for r in range(4):
            e(f"v_cndmask_b32 v{b+4+r}, 0, v{b+4+r}, vcc")
        for r in range(4):
            e(f"v_add_f32 v{b+r}, v{b+r}, v{b+4+r}")
        e(f"v_fma_f32 v{vL}, v{vT0}, v{b+9}, v{vL}")
        for r in range(4):
            e(f"v_fma_f32 v{vAcc0+r}, v{vT0}, v{b+r}, v{vAcc0+r}")
    WS0 = 1 << 20
    e(f"s_lshl_b32 s{sTmp}, s2, 10")
    e(f"s_add_u32 s{sTmp}, s{sTmp}, {WS0}")
    e(f"s_add_u32 s14, s14, s{sTmp}")
    e(f"s_addc_u32 s15, s15, 0")
    e(f"v_mov_b32 v{vS}, v{vAcc0}")
    e(f"v_mov_b32 v{vS+1}, v{vAcc0+1}")
    e(f"v_mov_b32 v{vS+2}, v{vAcc0+2}")
    e(f"v_mov_b32 v{vS+3}, v{vAcc0+3}")
    e("s_mov_b32 exec_lo, 0")
    e("s_mov_b32 exec_hi, 0x10000")
    e(f"v_mov_b32 v{vS}, v{vM}")
    e(f"v_mov_b32 v{vS+1}, v{vL}")
    e("s_mov_b32 exec_lo, -1")
    e("s_mov_b32 exec_hi, 0x1ffff")
    e(f"v_lshlrev_b32 v{vT0}, 4, v{vLane}")
    e(f"global_store_dwordx4 v{vT0}, {R4(vS)}, s[14:15] sc0 sc1")
    e("s_waitcnt vmcnt(0)")
    e(f"s_lshr_b32 s{sTmp}, s{sH}, 2")
    e(f"s_lshl_b32 s{sTmp}, s{sTmp}, 2")
    e(f"s_and_b32 s{sTmp+1}, s{sH}, 3")
    e(f"s_lshl_b32 s{sTmp+1}, s{sTmp+1}, 3")
    e(f"s_lshl_b32 s38, 1, s{sTmp+1}")
    e("s_mov_b64 exec, 1")
    e(f"v_mov_b32 v{vT1}, s{sTmp}")
    e(f"v_mov_b32 v{vT2}, s38")
    e(f"global_atomic_add v{vT3}, v{vT1}, v{vT2}, s[12:13] sc0")
    e("s_waitcnt vmcnt(0)")
    e(f"v_readfirstlane_b32 s38, v{vT3}")
    e(f"s_lshr_b32 s38, s38, s{sTmp+1}")
    e(f"s_and_b32 s38, s38, 0xff")
    e(f"s_cmp_lg_u32 s38, {nsplit-1}")
    e("s_cbranch_scc1 L_fin")
    assert nsplit == 2
    e("s_mov_b32 exec_lo, -1")
    e("s_mov_b32 exec_hi, 0x1ffff")
    e(f"s_and_b32 s38, s2, 1")
    e(f"s_lshl_b32 s38, s38, 11")
    e(f"s_sub_u32 s38, 1024, s38")
    e(f"s_ashr_i32 s39, s38, 31")
    e(f"s_add_u32 s14, s14, s38")
    e(f"s_addc_u32 s15, s15, s39")
    e(f"global_load_dwordx4 {R4(vD)}, v{vT0}, s[14:15] sc0 sc1")
    e("s_waitcnt vmcnt(0)")
    e(f"v_readlane_b32 s38, v{vD}, 48")
    e(f"v_readlane_b32 s39, v{vD+1}, 48")
    e("s_mov_b64 exec, -1")
    e("s_nop 1")
    e(f"v_max_f32 v{vT1}, s38, v{vM}")
    e(f"v_mul_f32 v{vT2}, s{sC}, v{vT1}")
    e(f"v_fma_f32 v{vT3}, v{vM}, s{sC}, -v{vT2}")
    e(f"v_mov_b32 v{vT1}, s38")
    e(f"v_fma_f32 v{vT2}, v{vT1}, s{sC}, -v{vT2}")
    e(f"v_exp_f32 v{vT3}, v{vT3}")
    e(f"v_exp_f32 v{vT2}, v{vT2}")
    e("s_nop 0")
    e(f"v_mul_f32 v{vL}, v{vT3}, v{vL}")
    e(f"v_fma_f32 v{vL}, v{vT2}, s39, v{vL}")
    e(f"v_rcp_f32 v{vL}, v{vL}")
    e("s_nop 0")
    e(f"v_mul_f32 v{vT3}, v{vT3}, v{vL}")
    e(f"v_mul_f32 v{vT2}, v{vT2}, v{vL}")
    for r in range(4):
        e(f"v_mul_f32 v{vAcc0+r}, v{vT3}, v{vAcc0+r}")
    for r in range(4):
        e(f"v_fma_f32 v{vAcc0+r}, v{vT2}, v{vD+r}, v{vAcc0+r}")
    e(f"v_cvt_pk_bf16_f32 v{vS}, v{vAcc0}, v{vAcc0+1}")
    e(f"v_cvt_pk_bf16_f32 v{vS+1}, v{vAcc0+2}, v{vAcc0+3}")
    e(f"s_mul_i32 s38, s{sH}, 384")
    e(f"s_add_u32 s10, s10, s38")
    e(f"s_addc_u32 s11, s11, 0")
    e(f"v_lshlrev_b32 v{vT0}, 3, v{vLane}")
    e("s_mov_b32 exec_lo, -1")
    e("s_mov_b32 exec_hi, 0xffff")
    e(f"global_store_dwordx2 v{vT0}, v[{vS}:{vS+1}], s[10:11]")
    e.label("L_fin")
    if stamp:
        e("s_mov_b64 exec, -1")
        e("s_load_dwordx2 s[14:15], s[0:1], 40")
        e("s_memrealtime s[44:45]")
        e("s_getreg_b32 s46, hwreg(HW_REG_XCC_ID)")
        e("s_waitcnt lgkmcnt(0)")
        e("s_lshl_b32 s47, s2, 5")
        e("v_mov_b32 v20, s40")
        e("v_mov_b32 v21, s41")
        e("v_mov_b32 v22, s44")
        e("v_mov_b32 v23, s45")
        e("v_mov_b32 v24, s46")
        e("v_mov_b32 v25, s42")
        e("v_mov_b32 v26, s47")
        e("s_mov_b64 exec, 1")
        e("global_store_dwordx4 v26, v[20:23], s[14:15]")
        e("global_store_dwordx2 v26, v[24:25], s[14:15] offset:16")
    e("s_branch L_end")
    for tag in rare_blocks:
        e.label(f"L_rare_{tag}")
        e(f"v_mov_b32 v{vT1}, v{vT0}")
        e("s_nop 1")
        e(f"v_permlane32_swap_b32 v{vT0}, v{vT1}")
        e(f"v_max_f32 v{vT0}, v{vT0}, v{vT1}")
        e(f"v_mov_b32 v{vT1}, v{vT0}")
        e("s_nop 1")
        e(f"v_permlane16_swap_b32 v{vT0}, v{vT1}")
        e(f"v_max_f32 v{vT0}, v{vT0}, v{vT1}")
        e(f"v_max_f32 v{vM}, v{vM}, v{vT0}")
        e(f"v_mul_f32 v{vT1}, s{sC}, v{vM}")
        e(f"v_sub_f32 v{vT0}, v{vMc}, v{vT1}")
        e(f"v_exp_f32 v{vT0}, v{vT0}")
        e(f"v_mov_b32 v{vMc}, v{vT1}")
        for r in range(8):
            e(f"v_mul_f32 v{vAcc0+r}, v{vT0}, v{vAcc0+r}")
        e(f"v_mul_f32 v{vL}, v{vT0}, v{vL}")
        e(f"s_branch L_back_{tag}")
    e.label("L_end")
    e("s_endpgm")
    e.o.append('.section .rodata,"a"')
    e.o.append(".p2align 6")
    e.o.append(f".amdhsa_kernel {KNAME}")
    e.o.append(f"  .amdhsa_next_free_vgpr {nvgpr}")
    e.o.append("  .amdhsa_next_free_sgpr 64")
    e.o.append(f"  .amdhsa_accum_offset {(nvgpr+3)//4*4}")
    e.o.append("  .amdhsa_group_segment_fixed_size 0")
    e.o.append("  .amdhsa_kernarg_size 48")
    e.o.append("  .amdhsa_user_sgpr_count 2")
    e.o.append("  .amdhsa_user_sgpr_kernarg_segment_ptr 1")
    e.o.append("  .amdhsa_system_sgpr_workgroup_id_x 1")
    e.o.append(".end_amdhsa_kernel")
    return HEADER + e.text()

if __name__ == "__main__":
    import argparse
    ap = argparse.ArgumentParser()
    ap.add_argument("-o", default="/dev/stdout")
    ap.add_argument("--nw", type=int, default=4)
    ap.add_argument("--depth", type=int, default=2)
    ap.add_argument("--pol", default="nt")
    ap.add_argument("--stamp", action="store_true")
    a = ap.parse_args()
    open(a.o, "w").write(gen(nw=a.nw, depth=a.depth, pol=a.pol, stamp=a.stamp))
```

```python
import sys, math

KNAME = "standalone__softmax_full_bidir__decode_kernel"
HEADER = """; Kernarg layout for this problem (48 bytes, ptrs only, base s[0:1]):
"""
TENSOR_BYTES = 128 * 4096 * 384
TILE = 6144
CSCALE = (192 ** -0.5) * math.log2(math.e)

import struct
def f2u(x):
    return struct.unpack("<I", struct.pack("<f", x))[0]

class E:
    def __init__(self):
        self.o = []
    def __call__(self, s):
        self.o.append("  " + s)
    def label(self, s):
        self.o.append(s + ":")
    def c(self, s):
        self.o.append("  ; " + s)
    def text(self):
        return "\n".join(self.o) + "\n"

def gen(nw=4, depth=2, pol="nt", stamp=False, nsplit=2, dbgstamp=False):
    nwg = 128 * nsplit
    chunk = TENSOR_BYTES // nwg
    ntile = chunk // TILE // nw
    e = E()
    vLane = 0
    vKo1, vKo2, vVo1, vVo2 = 1, 2, 3, 4
    vM, vMc, vL = 5, 6, 7
    vT0, vT1, vT2, vT3 = 8, 9, 10, 11
    vMask = 12
    vQ1, vQ2a, vQ2b = 16, 20, 24
    vAcc0, vAcc1 = 28, 32
    vD = 36
    vS = 52
    vP = 56
    vA0, vA1 = 64, 68
    vBuf = 72
    nvgpr = vBuf + 48 * depth
    def Kb(d, t): r = vBuf + 48*d + 4*t; return r
    def Vb(d, t): r = vBuf + 48*d + 24 + 4*t; return r
    def R4(r): return f"v[{r}:{r+3}]"
    sK, sV, sQ = 16, 20, 24
    sOff = 28
    sCnt = 29
    sC = 30
    sWave = 31
    sLo8 = 32
    sTmp = 34
    sH = 36
    LSTRIDE = 1088
    e.o.append("; @launch grid=(%d,1,1) block=(%d,1,1) lds=%d" % (nwg, nw*64, LSTRIDE*nw))
    e.o.append('.amdgcn_target "amdgcn-amd-amdhsa--gfx950"')
    e.o.append(".text")
    e.o.append(f".globl {KNAME}")
    e.o.append(".p2align 8")
    e.o.append(f".type {KNAME},@function")
    e.label(KNAME)
    e(f"s_cmp_ge_u32 s2, {nwg}")
    e("s_cbranch_scc1 L_end")
    e("s_load_dwordx8 s[4:11], s[0:1], 0")
    e("s_load_dwordx4 s[12:15], s[0:1], 32")
    if stamp or dbgstamp:
        e("s_memrealtime s[40:41]")
    e(f"v_lshrrev_b32 v{vT0}, 6, v0")
    e(f"v_and_b32 v{vLane}, 63, v0")
    e(f"v_readfirstlane_b32 s{sWave}, v{vT0}")
    e(f"v_and_b32 v{vT0}, 15, v{vLane}")
    e(f"v_lshrrev_b32 v{vT1}, 4, v{vLane}")
    e(f"v_lshrrev_b32 v{vT2}, 2, v{vT0}")
    e(f"v_mul_u32_u24 v{vT2}, 1536, v{vT2}")
    e(f"v_and_b32 v{vT3}, 3, v{vLane}")
    e(f"v_lshl_add_u32 v{vT2}, v{vT3}, 4, v{vT2}")
    e(f"v_lshl_add_u32 v{vKo1}, v{vT1}, 6, v{vT2}")
    e(f"v_lshrrev_b32 v{vKo2}, 1, v{vT1}")
    e(f"v_mul_u32_u24 v{vKo2}, 384, v{vKo2}")
    e(f"v_add_u32 v{vKo2}, v{vKo2}, v{vT2}")
    e(f"v_and_b32 v{vT2}, 1, v{vT1}")
    e(f"v_lshl_add_u32 v{vKo2}, v{vT2}, 6, v{vKo2}")
    e(f"v_add_u32 v{vKo2}, 256, v{vKo2}")
    e(f"v_mul_u32_u24 v{vT2}, 1536, v{vT1}")
    e(f"v_lshl_add_u32 v{vVo1}, v{vT0}, 4, v{vT2}")
    e(f"v_lshrrev_b32 v{vVo2}, 3, v{vT0}")
    e(f"v_mul_u32_u24 v{vVo2}, 384, v{vVo2}")
    e(f"v_add_u32 v{vVo2}, v{vVo2}, v{vT2}")
    e(f"v_and_b32 v{vT2}, 7, v{vLane}")
    e(f"v_lshl_add_u32 v{vVo2}, v{vT2}, 4, v{vVo2}")
    e(f"v_add_u32 v{vVo2}, 256, v{vVo2}")
    e(f"v_lshlrev_b32 v{vT2}, 4, v{vT3}")
    e(f"v_lshl_add_u32 v{vD}, v{vT1}, 6, v{vT2}")
    e(f"v_and_b32 v{vD+1}, 1, v{vT1}")
    e(f"v_lshl_add_u32 v{vD+1}, v{vD+1}, 6, v{vT2}")
    e(f"v_add_u32 v{vD+1}, 256, v{vD+1}")
    e(f"v_mov_b32 v{vD+2}, 0x40000000")
    e(f"v_cmp_gt_u32 vcc, 32, v{vLane}")
    e("s_nop 1")
    e(f"v_cndmask_b32 v{vD+3}, v{vD+2}, v{vD+1}, vcc")
    e(f"v_cndmask_b32 v{vD+2}, v{vD+1}, v{vD+2}, vcc")
    e("s_waitcnt lgkmcnt(0)")
    for (sr, p) in ((sK, 6), (sV, 8)):
        e(f"s_mov_b32 s{sr}, s{p}")
        e(f"s_and_b32 s{sr+1}, s{p+1}, 0xffff")
        e(f"s_mov_b32 s{sr+2}, {TENSOR_BYTES}")
        e(f"s_mov_b32 s{sr+3}, 0x20000")
    e(f"s_mul_i32 s{sOff}, s2, {chunk}")
    e(f"s_mul_i32 s{sTmp}, s{sWave}, {TILE}")
    e(f"s_add_u32 s{sOff}, s{sOff}, s{sTmp}")
    def issueK(d):
        for R in range(4):
            e(f"buffer_load_dwordx4 {R4(Kb(d,R))}, v{vKo1}, s[{sK}:{sK+3}], s{sOff} offen offset:{R*384} {pol}")
        for u in range(2):
            e(f"buffer_load_dwordx4 {R4(Kb(d,4+u))}, v{vKo2}, s[{sK}:{sK+3}], s{sOff} offen offset:{u*768} {pol}")
    def issueV(d):
        for r in range(4):
            e(f"buffer_load_dwordx4 {R4(Vb(d,r))}, v{vVo1}, s[{sV}:{sV+3}], s{sOff} offen offset:{r*384} {pol}")
        for u in range(2):
            e(f"buffer_load_dwordx4 {R4(Vb(d,4+u))}, v{vVo2}, s[{sV}:{sV+3}], s{sOff} offen offset:{u*768} {pol}")
    step = TILE * nw
    issueK(0)
    lg = int(math.log2(nsplit))
    e(f"s_lshr_b32 s{sH}, s2, {lg}")
    e(f"s_mul_i32 s{sTmp}, s{sH}, 384")
    e(f"s_add_u32 s{sQ}, s4, s{sTmp}")
    e(f"s_addc_u32 s{sQ+1}, s5, 0")
    e(f"s_and_b32 s{sQ+1}, s{sQ+1}, 0xffff")
    e(f"s_mov_b32 s{sQ+2}, 384")
    e(f"s_mov_b32 s{sQ+3}, 0x20000")
    e(f"buffer_load_dwordx4 {R4(vQ1)}, v{vD}, s[{sQ}:{sQ+3}], 0 offen")
    e(f"buffer_load_dwordx4 {R4(vQ2a)}, v{vD+3}, s[{sQ}:{sQ+3}], 0 offen")
    e(f"buffer_load_dwordx4 {R4(vQ2b)}, v{vD+2}, s[{sQ}:{sQ+3}], 0 offen")
    issueV(0)
    e(f"s_add_u32 s{sOff}, s{sOff}, {step}")
    for d in range(1, depth):
        issueK(d); issueV(d)
        e(f"s_add_u32 s{sOff}, s{sOff}, {step}")
    e(f"s_mov_b32 s{sC}, {f2u(CSCALE):#x}")
    e(f"v_mov_b32 v{vM}, 0xff7fffff")
    e(f"v_mov_b32 v{vMc}, 0xff7fffff")
    e(f"v_mov_b32 v{vL}, 0")
    for r in range(8):
        e(f"v_mov_b32 v{vAcc0+r}, 0")
    e(f"v_and_b32 v{vT2}, 1, v{vLane}")
    e(f"v_lshlrev_b32 v{vT2}, 4, v{vT2}")
    e(f"v_mov_b32 v{vT3}, 0xffff")
    e(f"v_lshlrev_b32 v{vT2}, v{vT2}, v{vT3}")
    e(f"v_bfe_u32 v{vT3}, v{vLane}, 1, 2")
    for k in range(4):
        e(f"v_cmp_eq_u32 vcc, {k}, v{vT3}")
        e("s_nop 1")
        e(f"v_cndmask_b32 v{vMask+k}, 0, v{vT2}, vcc")
    e(f"v_cmp_gt_u32 s[{sLo8}:{sLo8+1}], 8, v{vT0}")
    nld = 6
    rare_blocks = []
    def tile(d, wK, wV, do_issue, tag):
        e(f"s_waitcnt vmcnt({wK})")
        D = [vD + 4*R for R in range(4)]
        for R in range(4):
            e(f"v_mfma_f32_16x16x32_bf16 {R4(D[R])}, {R4(Kb(d,R))}, {R4(vQ1)}, 0")
        for R in range(4):
            q2 = vQ2a if (R & 1) == 0 else vQ2b
            e(f"v_mfma_f32_16x16x32_bf16 {R4(D[R])}, {R4(Kb(d,4+(R>>1)))}, {R4(q2)}, {R4(D[R])}")
        if do_issue:
            issueK(d)
            e("s_nop 1")
        else:
            e("s_nop 7")
        for b in range(4):
            for R in range(4):
                qp = f"quad_perm:[{b},{b},{b},{b}] row_mask:0xf bank_mask:0xf"
                if b == 0:
                    e(f"v_mov_b32_dpp v{vS+R}, v{D[R]} {qp}")
                else:
                    e(f"v_add_f32_dpp v{vS+R}, v{D[R]+b}, v{vS+R} {qp}")
        e(f"v_max3_f32 v{vT0}, v{vS}, v{vS+1}, v{vS+2}")
        e(f"v_max_f32 v{vT0}, v{vT0}, v{vS+3}")
        e(f"v_cmp_gt_f32 vcc, v{vT0}, v{vM}")
        e(f"s_cbranch_vccnz L_rare_{tag}")
        e.label(f"L_back_{tag}")
        rare_blocks.append(tag)
        for r in range(4):
            e(f"v_fma_f32 v{vS+r}, v{vS+r}, s{sC}, -v{vMc}")
        for r in range(4):
            e(f"v_exp_f32 v{vS+r}, v{vS+r}")
        e("s_nop 0")
        for r in range(4):
            e(f"v_cvt_pk_bf16_f32 v{vP+r}, v{vS+r}, v{vS+r}")
        e(f"v_add_f32 v{vT0}, v{vS}, v{vS+1}")
        e(f"v_add_f32 v{vT1}, v{vS+2}, v{vS+3}")
        e(f"v_cndmask_b32 v{vP+4}, v{vP+1}, v{vP}, s[{sLo8}:{sLo8+1}]")
        e(f"v_cndmask_b32 v{vP+5}, v{vP+3}, v{vP+2}, s[{sLo8}:{sLo8+1}]")
        e(f"v_add_f32 v{vT0}, v{vT0}, v{vT1}")
        e(f"v_add_f32 v{vL}, v{vL}, v{vT0}")
        seq = [(0, vAcc0, 0), (1, vAcc0, 1), (2, vAcc0, 2), (3, vAcc0, 3), (4, vAcc1, 4), (5, vAcc1, 5)]
        abuf = [vA0, vA1]
        def mkA(n):
            p, acc, vt = seq[n]
            for k in range(4):
                e(f"v_and_b32 v{abuf[n&1]+k}, v{vP+p}, v{vMask+k}")
        mkA(0)
        for n in range(6):
            if n + 1 < 6:
                mkA(n + 1)
            else:
                e("s_nop 1")
            if n == 0:
                e(f"s_waitcnt vmcnt({wV})")
            p, acc, vt = seq[n]
            e(f"v_mfma_f32_16x16x32_bf16 {R4(acc)}, {R4(abuf[n&1])}, {R4(Vb(d,vt))}, {R4(acc)}")
        if do_issue:
            issueV(d)
            e(f"s_add_u32 s{sOff}, s{sOff}, {step}")
    nmain = ntile - depth
    wfull = nld * (2*depth - 1)
    e(f"s_waitcnt vmcnt({6 + 12*(depth-1)})")
    if nmain > 0:
        assert nmain % depth == 0, (nmain, depth)
        e(f"s_mov_b32 s{sCnt}, {nmain // depth}")
        e.label("L_loop")
        for d in range(depth):
            tile(d, wfull, wfull, True, f"m{d}")
        e(f"s_sub_u32 s{sCnt}, s{sCnt}, 1")
        e(f"s_cmp_lg_u32 s{sCnt}, 0")
        e("s_cbranch_scc1 L_loop")
    for x in range(depth):
        d = x
        rem = depth - 1 - x
        wK = nld * (2*rem + 1)
        wV = nld * (2*rem)
        tile(d, wK, wV, False, f"e{x}")
    if stamp or dbgstamp:
        e("s_memrealtime s[42:43]")
    e.c("reduce l across groups")
    e(f"v_mov_b32 v{vT0}, v{vL}")
    e("s_nop 1")
    e(f"v_permlane32_swap_b32 v{vL}, v{vT0}")
    e(f"v_add_f32 v{vL}, v{vL}, v{vT0}")
    e(f"v_mov_b32 v{vT0}, v{vL}")
    e("s_nop 1")
    e(f"v_permlane16_swap_b32 v{vL}, v{vT0}")
    e(f"v_add_f32 v{vL}, v{vL}, v{vT0}")
    e(f"s_mul_i32 s{sTmp}, s{sWave}, {LSTRIDE}")
    e(f"v_and_b32 v{vT0}, 15, v{vLane}")
    e(f"v_lshrrev_b32 v{vT1}, 4, v{vLane}")
    e(f"v_lshlrev_b32 v{vT2}, 5, v{vT0}")
    e(f"v_lshl_add_u32 v{vT2}, v{vT1}, 4, v{vT2}")
    e(f"v_add_u32 v{vT2}, s{sTmp}, v{vT2}")
    e(f"v_lshrrev_b32 v{vT3}, 3, v{vT0}")
    e(f"v_lshlrev_b32 v{vT3}, 8, v{vT3}")
    e(f"v_and_b32 v{vT0}, 7, v{vT0}")
    e(f"v_lshl_add_u32 v{vT3}, v{vT0}, 5, v{vT3}")
    e(f"v_and_b32 v{vT1}, 1, v{vT1}")
    e(f"v_lshl_add_u32 v{vT3}, v{vT1}, 4, v{vT3}")
    e(f"v_add_u32 v{vT3}, s{sTmp}, v{vT3}")
    e(f"v_add_u32 v{vT3}, 512, v{vT3}")
    e(f"v_mov_b32 v{vT0}, s{sTmp}")
    e(f"v_mov_b32 v{vS}, v{vM}")
    e(f"v_mov_b32 v{vS+1}, v{vL}")
    e("s_nop 7")
    e("s_mov_b32 exec_lo, -1")
    e("s_mov_b32 exec_hi, 0")
    e(f"ds_write_b128 v{vT2}, {R4(vAcc0)}")
    e("s_mov_b32 exec_lo, 0x00ff00ff")
    e("s_mov_b32 exec_hi, 0xff00ff00")
    e(f"ds_write_b128 v{vT3}, {R4(vAcc1)}")
    e("s_mov_b64 exec, 1")
    e(f"ds_write_b64 v{vT0}, v[{vS}:{vS+1}] offset:1024")
    e("s_mov_b64 exec, -1")
    e("s_waitcnt lgkmcnt(0)")
    e("s_barrier")
    e(f"s_cmp_lg_u32 s{sWave}, 0")
    e("s_cbranch_scc1 L_end")
    vX = vBuf
    e(f"v_lshlrev_b32 v{vT0}, 4, v{vLane}")
    e(f"v_mov_b32 v{vT1}, 0")
    for w in range(nw):
        e(f"ds_read_b128 {R4(vX+12*w)}, v{vT0} offset:{w*LSTRIDE}")
        e(f"ds_read_b128 {R4(vX+12*w+4)}, v{vT0} offset:{w*LSTRIDE+256}")
        e(f"ds_read_b64 v[{vX+12*w+8}:{vX+12*w+9}], v{vT1} offset:{w*LSTRIDE+1024}")
        if w % 4 == 3:
            e("s_waitcnt lgkmcnt(0)")
    e("s_waitcnt lgkmcnt(0)")
    e(f"v_cmp_le_u32 vcc, 32, v{vLane}")
    e(f"v_mov_b32 v{vM}, v{vX+8}")
    for w in range(1, nw):
        e(f"v_max_f32 v{vM}, v{vM}, v{vX+12*w+8}")
    e(f"v_mul_f32 v{vMc}, s{sC}, v{vM}")
    e(f"v_mov_b32 v{vL}, 0")
    for r in range(4):
        e(f"v_mov_b32 v{vAcc0+r}, 0")
    for w in range(nw):
        b = vX + 12*w
        e(f"v_fma_f32 v{vT0}, v{b+8}, s{sC}, -v{vMc}")
        e(f"v_exp_f32 v{vT0}, v{vT0}")
        for r in range(4):
            e(f"v_cndmask_b32 v{b+4+r}, 0, v{b+4+r}, vcc")
        for r in range(4):
            e(f"v_add_f32 v{b+r}, v{b+r}, v{b+4+r}")
        e(f"v_fma_f32 v{vL}, v{vT0}, v{b+9}, v{vL}")
        for r in range(4):
            e(f"v_fma_f32 v{vAcc0+r}, v{vT0}, v{b+r}, v{vAcc0+r}")
    WS0 = 1 << 20
    e(f"s_lshl_b32 s{sTmp}, s2, 10")
    e(f"s_add_u32 s{sTmp}, s{sTmp}, {WS0}")
    e(f"s_add_u32 s14, s14, s{sTmp}")
    e(f"s_addc_u32 s15, s15, 0")
    e(f"v_mov_b32 v{vS}, v{vAcc0}")
    e(f"v_mov_b32 v{vS+1}, v{vAcc0+1}")
    e(f"v_mov_b32 v{vS+2}, v{vAcc0+2}")
    e(f"v_mov_b32 v{vS+3}, v{vAcc0+3}")
    e("s_mov_b32 exec_lo, 0")
    e("s_mov_b32 exec_hi, 0x10000")
    e(f"v_mov_b32 v{vS}, v{vM}")
    e(f"v_mov_b32 v{vS+1}, v{vL}")
    e("s_mov_b32 exec_lo, -1")
    e("s_mov_b32 exec_hi, 0x1ffff")
    e(f"v_lshlrev_b32 v{vT0}, 4, v{vLane}")
    e(f"global_store_dwordx4 v{vT0}, {R4(vS)}, s[14:15] sc0 sc1")
    e("s_waitcnt vmcnt(0)")
    e(f"s_lshr_b32 s{sTmp}, s{sH}, 2")
    e(f"s_lshl_b32 s{sTmp}, s{sTmp}, 2")
    e(f"s_add_u32 s{sTmp}, s{sTmp}, 128")
    e(f"s_and_b32 s{sTmp+1}, s{sH}, 3")
    e(f"s_lshl_b32 s{sTmp+1}, s{sTmp+1}, 3")
    e(f"s_lshl_b32 s38, 1, s{sTmp+1}")
    e("s_mov_b64 exec, 1")
    e(f"v_mov_b32 v{vT1}, s{sTmp}")
    e(f"v_mov_b32 v{vT2}, s38")
    e(f"global_atomic_add v{vT3}, v{vT1}, v{vT2}, s[12:13] sc0")
    e("s_waitcnt vmcnt(0)")
    e(f"v_readfirstlane_b32 s38, v{vT3}")
    e(f"s_lshr_b32 s38, s38, s{sTmp+1}")
    e(f"s_and_b32 s38, s38, 0xff")
    e(f"s_cmp_lg_u32 s38, {nsplit-1}")
    e("s_cbranch_scc1 L_fin")
    assert nsplit == 2
    e("s_mov_b32 exec_lo, -1")
    e("s_mov_b32 exec_hi, 0x1ffff")
    e(f"s_and_b32 s38, s2, 1")
    e(f"s_lshl_b32 s38, s38, 11")
    e(f"s_sub_u32 s38, 1024, s38")
    e(f"s_ashr_i32 s39, s38, 31")
    e(f"s_add_u32 s14, s14, s38")
    e(f"s_addc_u32 s15, s15, s39")
    e(f"global_load_dwordx4 {R4(vD)}, v{vT0}, s[14:15] sc0 sc1")
    e("s_waitcnt vmcnt(0)")
    e(f"v_readlane_b32 s38, v{vD}, 48")
    e(f"v_readlane_b32 s39, v{vD+1}, 48")
    e("s_mov_b64 exec, -1")
    e("s_nop 1")
    e(f"v_max_f32 v{vT1}, s38, v{vM}")
    e(f"v_mul_f32 v{vT2}, s{sC}, v{vT1}")
    e(f"v_fma_f32 v{vT3}, v{vM}, s{sC}, -v{vT2}")
    e(f"v_mov_b32 v{vT1}, s38")
    e(f"v_fma_f32 v{vT2}, v{vT1}, s{sC}, -v{vT2}")
    e(f"v_exp_f32 v{vT3}, v{vT3}")
    e(f"v_exp_f32 v{vT2}, v{vT2}")
    e("s_nop 0")
    e(f"v_mul_f32 v{vL}, v{vT3}, v{vL}")
    e(f"v_fma_f32 v{vL}, v{vT2}, s39, v{vL}")
    e(f"v_rcp_f32 v{vL}, v{vL}")
    e("s_nop 0")
    e(f"v_mul_f32 v{vT3}, v{vT3}, v{vL}")
    e(f"v_mul_f32 v{vT2}, v{vT2}, v{vL}")
    for r in range(4):
        e(f"v_mul_f32 v{vAcc0+r}, v{vT3}, v{vAcc0+r}")
    for r in range(4):
        e(f"v_fma_f32 v{vAcc0+r}, v{vT2}, v{vD+r}, v{vAcc0+r}")
    e(f"v_cvt_pk_bf16_f32 v{vS}, v{vAcc0}, v{vAcc0+1}")
    e(f"v_cvt_pk_bf16_f32 v{vS+1}, v{vAcc0+2}, v{vAcc0+3}")
    e(f"s_mul_i32 s38, s{sH}, 384")
    e(f"s_add_u32 s10, s10, s38")
    e(f"s_addc_u32 s11, s11, 0")
    e(f"v_lshlrev_b32 v{vT0}, 3, v{vLane}")
    e("s_mov_b32 exec_lo, -1")
    e("s_mov_b32 exec_hi, 0xffff")
    e(f"global_store_dwordx2 v{vT0}, v[{vS}:{vS+1}], s[10:11]")
    e.label("L_fin")
    if dbgstamp:
        e("s_waitcnt vmcnt(0)")
        e("s_memrealtime s[44:45]")
        e("s_waitcnt lgkmcnt(0)")
        e("s_mov_b64 exec, 1")
        e("s_not_b32 s40, s40")
        e("s_not_b32 s46, s42")
        e("v_mov_b32 v20, s40")
        e("v_mov_b32 v21, s44")
        e("v_mov_b32 v22, 0")
        e("v_mov_b32 v23, s42")
        e("v_mov_b32 v24, s46")
        e("global_atomic_umax v22, v20, s[12:13]")
        e("global_atomic_umax v22, v21, s[12:13] offset:4")
        e("global_atomic_umax v22, v23, s[12:13] offset:8")
        e("global_atomic_umax v22, v24, s[12:13] offset:12")
    if stamp:
        e("s_mov_b64 exec, -1")
        e("s_load_dwordx2 s[14:15], s[0:1], 40")
        e("s_memrealtime s[44:45]")
        e("s_getreg_b32 s46, hwreg(HW_REG_XCC_ID)")
        e("s_waitcnt lgkmcnt(0)")
        e("s_lshl_b32 s47, s2, 5")
        e("v_mov_b32 v20, s40")
        e("v_mov_b32 v21, s41")
        e("v_mov_b32 v22, s44")
        e("v_mov_b32 v23, s45")
        e("v_mov_b32 v24, s46")
        e("v_mov_b32 v25, s42")
        e("v_mov_b32 v26, s47")
        e("s_mov_b64 exec, 1")
        e("global_store_dwordx4 v26, v[20:23], s[14:15]")
        e("global_store_dwordx2 v26, v[24:25], s[14:15] offset:16")
    e("s_branch L_end")
    for tag in rare_blocks:
        e.label(f"L_rare_{tag}")
        e(f"v_mov_b32 v{vT1}, v{vT0}")
        e("s_nop 1")
        e(f"v_permlane32_swap_b32 v{vT0}, v{vT1}")
        e(f"v_max_f32 v{vT0}, v{vT0}, v{vT1}")
        e(f"v_mov_b32 v{vT1}, v{vT0}")
        e("s_nop 1")
        e(f"v_permlane16_swap_b32 v{vT0}, v{vT1}")
        e(f"v_max_f32 v{vT0}, v{vT0}, v{vT1}")
        e(f"v_max_f32 v{vM}, v{vM}, v{vT0}")
        e(f"v_mul_f32 v{vT1}, s{sC}, v{vM}")
        e(f"v_sub_f32 v{vT0}, v{vMc}, v{vT1}")
        e(f"v_exp_f32 v{vT0}, v{vT0}")
        e(f"v_mov_b32 v{vMc}, v{vT1}")
        for r in range(8):
            e(f"v_mul_f32 v{vAcc0+r}, v{vT0}, v{vAcc0+r}")
        e(f"v_mul_f32 v{vL}, v{vT0}, v{vL}")
        e(f"s_branch L_back_{tag}")
    e.label("L_end")
    e("s_endpgm")
    e.o.append('.section .rodata,"a"')
    e.o.append(".p2align 6")
    e.o.append(f".amdhsa_kernel {KNAME}")
    e.o.append(f"  .amdhsa_next_free_vgpr {nvgpr}")
    e.o.append("  .amdhsa_next_free_sgpr 64")
    e.o.append(f"  .amdhsa_accum_offset {(nvgpr+3)//4*4}")
    e.o.append("  .amdhsa_group_segment_fixed_size 0")
    e.o.append("  .amdhsa_kernarg_size 48")
    e.o.append("  .amdhsa_user_sgpr_count 2")
    e.o.append("  .amdhsa_user_sgpr_kernarg_segment_ptr 1")
    e.o.append("  .amdhsa_system_sgpr_workgroup_id_x 1")
    e.o.append(".end_amdhsa_kernel")
    return HEADER + e.text()

if __name__ == "__main__":
    import argparse
    ap = argparse.ArgumentParser()
    ap.add_argument("-o", default="/dev/stdout")
    ap.add_argument("--nw", type=int, default=4)
    ap.add_argument("--depth", type=int, default=2)
    ap.add_argument("--pol", default="nt")
    ap.add_argument("--stamp", action="store_true")
    ap.add_argument("--dbgstamp", action="store_true")
    a = ap.parse_args()
    open(a.o, "w").write(gen(nw=a.nw, depth=a.depth, pol=a.pol, stamp=a.stamp, dbgstamp=a.dbgstamp))
```

```python
import sys, math

KNAME = "standalone__softmax_full_bidir__decode_kernel"
HEADER = """; Kernarg layout for this problem (48 bytes, ptrs only, base s[0:1]):
"""
TENSOR_BYTES = 128 * 4096 * 384
TILE = 6144
CSCALE = (192 ** -0.5) * math.log2(math.e)

import struct
def f2u(x):
    return struct.unpack("<I", struct.pack("<f", x))[0]

class E:
    def __init__(self):
        self.o = []
    def __call__(self, s):
        self.o.append("  " + s)
    def label(self, s):
        self.o.append(s + ":")
    def c(self, s):
        self.o.append("  ; " + s)
    def text(self):
        return "\n".join(self.o) + "\n"

def gen(nw=4, depth=2, pol="nt", stamp=False, nsplit=2, dbgstamp=False, codepf=False):
    nwg = 128 * nsplit
    chunk = TENSOR_BYTES // nwg
    ntile = chunk // TILE // nw
    e = E()
    vLane = 0
    vKo1, vKo2, vVo1, vVo2 = 1, 2, 3, 4
    vM, vMc, vL = 5, 6, 7
    vT0, vT1, vT2, vT3 = 8, 9, 10, 11
    vMask = 12
    vQ1, vQ2a, vQ2b = 16, 20, 24
    vAcc0, vAcc1 = 28, 32
    vD = 36
    vS = 52
    vP = 56
    vA0, vA1 = 64, 68
    vBuf = 72
    nvgpr = vBuf + 48 * depth
    def Kb(d, t): r = vBuf + 48*d + 4*t; return r
    def Vb(d, t): r = vBuf + 48*d + 24 + 4*t; return r
    def R4(r): return f"v[{r}:{r+3}]"
    sK, sV, sQ = 16, 20, 24
    sOff = 28
    sCnt = 29
    sC = 30
    sWave = 31
    sLo8 = 32
    sTmp = 34
    sH = 36
    LSTRIDE = 1088
    e.o.append("; @launch grid=(%d,1,1) block=(%d,1,1) lds=%d" % (nwg, nw*64, LSTRIDE*nw))
    e.o.append('.amdgcn_target "amdgcn-amd-amdhsa--gfx950"')
    e.o.append(".text")
    e.o.append(f".globl {KNAME}")
    e.o.append(".p2align 8")
    e.o.append(f".type {KNAME},@function")
    e.label(KNAME)
    e(f"s_cmp_ge_u32 s2, {nwg}")
    e("s_cbranch_scc1 L_end")
    e("s_load_dwordx8 s[4:11], s[0:1], 0")
    e("s_load_dwordx4 s[12:15], s[0:1], 32")
    if codepf:
        e("s_getpc_b64 s[48:49]")
        e.label("L_pc")
        e("v_and_b32 v62, 63, v0")
        e("v_lshlrev_b32 v62, 7, v62")
        e("v_min_u32 v62, L_end-L_pc, v62")
        e("global_load_dword v63, v62, s[48:49]")
    if stamp or dbgstamp:
        e("s_memrealtime s[40:41]")
    e(f"v_lshrrev_b32 v{vT0}, 6, v0")
    e(f"v_and_b32 v{vLane}, 63, v0")
    e(f"v_readfirstlane_b32 s{sWave}, v{vT0}")
    e(f"v_and_b32 v{vT0}, 15, v{vLane}")
    e(f"v_lshrrev_b32 v{vT1}, 4, v{vLane}")
    e(f"v_lshrrev_b32 v{vT2}, 2, v{vT0}")
    e(f"v_mul_u32_u24 v{vT2}, 1536, v{vT2}")
    e(f"v_and_b32 v{vT3}, 3, v{vLane}")
    e(f"v_lshl_add_u32 v{vT2}, v{vT3}, 4, v{vT2}")
    e(f"v_lshl_add_u32 v{vKo1}, v{vT1}, 6, v{vT2}")
    e(f"v_lshrrev_b32 v{vKo2}, 1, v{vT1}")
    e(f"v_mul_u32_u24 v{vKo2}, 384, v{vKo2}")
    e(f"v_add_u32 v{vKo2}, v{vKo2}, v{vT2}")
    e(f"v_and_b32 v{vT2}, 1, v{vT1}")
    e(f"v_lshl_add_u32 v{vKo2}, v{vT2}, 6, v{vKo2}")
    e(f"v_add_u32 v{vKo2}, 256, v{vKo2}")
    e(f"v_mul_u32_u24 v{vT2}, 1536, v{vT1}")
    e(f"v_lshl_add_u32 v{vVo1}, v{vT0}, 4, v{vT2}")
    e(f"v_lshrrev_b32 v{vVo2}, 3, v{vT0}")
    e(f"v_mul_u32_u24 v{vVo2}, 384, v{vVo2}")
    e(f"v_add_u32 v{vVo2}, v{vVo2}, v{vT2}")
    e(f"v_and_b32 v{vT2}, 7, v{vLane}")
    e(f"v_lshl_add_u32 v{vVo2}, v{vT2}, 4, v{vVo2}")
    e(f"v_add_u32 v{vVo2}, 256, v{vVo2}")
    e(f"v_lshlrev_b32 v{vT2}, 4, v{vT3}")
    e(f"v_lshl_add_u32 v{vD}, v{vT1}, 6, v{vT2}")
    e(f"v_and_b32 v{vD+1}, 1, v{vT1}")
    e(f"v_lshl_add_u32 v{vD+1}, v{vD+1}, 6, v{vT2}")
    e(f"v_add_u32 v{vD+1}, 256, v{vD+1}")
    e(f"v_mov_b32 v{vD+2}, 0x40000000")
    e(f"v_cmp_gt_u32 vcc, 32, v{vLane}")
    e("s_nop 1")
    e(f"v_cndmask_b32 v{vD+3}, v{vD+2}, v{vD+1}, vcc")
    e(f"v_cndmask_b32 v{vD+2}, v{vD+1}, v{vD+2}, vcc")
    e("s_waitcnt lgkmcnt(0)")
    for (sr, p) in ((sK, 6), (sV, 8)):
        e(f"s_mov_b32 s{sr}, s{p}")
        e(f"s_and_b32 s{sr+1}, s{p+1}, 0xffff")
        e(f"s_mov_b32 s{sr+2}, {TENSOR_BYTES}")
        e(f"s_mov_b32 s{sr+3}, 0x20000")
    e(f"s_mul_i32 s{sOff}, s2, {chunk}")
    e(f"s_mul_i32 s{sTmp}, s{sWave}, {TILE}")
    e(f"s_add_u32 s{sOff}, s{sOff}, s{sTmp}")
    def issueK(d):
        for R in range(4):
            e(f"buffer_load_dwordx4 {R4(Kb(d,R))}, v{vKo1}, s[{sK}:{sK+3}], s{sOff} offen offset:{R*384} {pol}")
        for u in range(2):
            e(f"buffer_load_dwordx4 {R4(Kb(d,4+u))}, v{vKo2}, s[{sK}:{sK+3}], s{sOff} offen offset:{u*768} {pol}")
    def issueV(d):
        for r in range(4):
            e(f"buffer_load_dwordx4 {R4(Vb(d,r))}, v{vVo1}, s[{sV}:{sV+3}], s{sOff} offen offset:{r*384} {pol}")
        for u in range(2):
            e(f"buffer_load_dwordx4 {R4(Vb(d,4+u))}, v{vVo2}, s[{sV}:{sV+3}], s{sOff} offen offset:{u*768} {pol}")
    step = TILE * nw
    issueK(0)
    lg = int(math.log2(nsplit))
    e(f"s_lshr_b32 s{sH}, s2, {lg}")
    e(f"s_mul_i32 s{sTmp}, s{sH}, 384")
    e(f"s_add_u32 s{sQ}, s4, s{sTmp}")
    e(f"s_addc_u32 s{sQ+1}, s5, 0")
    e(f"s_and_b32 s{sQ+1}, s{sQ+1}, 0xffff")
    e(f"s_mov_b32 s{sQ+2}, 384")
    e(f"s_mov_b32 s{sQ+3}, 0x20000")
    e(f"buffer_load_dwordx4 {R4(vQ1)}, v{vD}, s[{sQ}:{sQ+3}], 0 offen")
    e(f"buffer_load_dwordx4 {R4(vQ2a)}, v{vD+3}, s[{sQ}:{sQ+3}], 0 offen")
    e(f"buffer_load_dwordx4 {R4(vQ2b)}, v{vD+2}, s[{sQ}:{sQ+3}], 0 offen")
    issueV(0)
    e(f"s_add_u32 s{sOff}, s{sOff}, {step}")
    for d in range(1, depth):
        issueK(d); issueV(d)
        e(f"s_add_u32 s{sOff}, s{sOff}, {step}")
    e(f"s_mov_b32 s{sC}, {f2u(CSCALE):#x}")
    e(f"v_mov_b32 v{vM}, 0xff7fffff")
    e(f"v_mov_b32 v{vMc}, 0xff7fffff")
    e(f"v_mov_b32 v{vL}, 0")
    for r in range(8):
        e(f"v_mov_b32 v{vAcc0+r}, 0")
    e(f"v_and_b32 v{vT2}, 1, v{vLane}")
    e(f"v_lshlrev_b32 v{vT2}, 4, v{vT2}")
    e(f"v_mov_b32 v{vT3}, 0xffff")
    e(f"v_lshlrev_b32 v{vT2}, v{vT2}, v{vT3}")
    e(f"v_bfe_u32 v{vT3}, v{vLane}, 1, 2")
    for k in range(4):
        e(f"v_cmp_eq_u32 vcc, {k}, v{vT3}")
        e("s_nop 1")
        e(f"v_cndmask_b32 v{vMask+k}, 0, v{vT2}, vcc")
    e(f"v_cmp_gt_u32 s[{sLo8}:{sLo8+1}], 8, v{vT0}")
    nld = 6
    rare_blocks = []
    def tile(d, wK, wV, do_issue, tag):
        e(f"s_waitcnt vmcnt({wK})")
        D = [vD + 4*R for R in range(4)]
        for R in range(4):
            e(f"v_mfma_f32_16x16x32_bf16 {R4(D[R])}, {R4(Kb(d,R))}, {R4(vQ1)}, 0")
        for R in range(4):
            q2 = vQ2a if (R & 1) == 0 else vQ2b
            e(f"v_mfma_f32_16x16x32_bf16 {R4(D[R])}, {R4(Kb(d,4+(R>>1)))}, {R4(q2)}, {R4(D[R])}")
        if do_issue:
            issueK(d)
            e("s_nop 1")
        else:
            e("s_nop 7")
        for b in range(4):
            for R in range(4):
                qp = f"quad_perm:[{b},{b},{b},{b}] row_mask:0xf bank_mask:0xf"
                if b == 0:
                    e(f"v_mov_b32_dpp v{vS+R}, v{D[R]} {qp}")
                else:
                    e(f"v_add_f32_dpp v{vS+R}, v{D[R]+b}, v{vS+R} {qp}")
        e(f"v_max3_f32 v{vT0}, v{vS}, v{vS+1}, v{vS+2}")
        e(f"v_max_f32 v{vT0}, v{vT0}, v{vS+3}")
        e(f"v_cmp_gt_f32 vcc, v{vT0}, v{vM}")
        e(f"s_cbranch_vccnz L_rare_{tag}")
        e.label(f"L_back_{tag}")
        rare_blocks.append(tag)
        for r in range(4):
            e(f"v_fma_f32 v{vS+r}, v{vS+r}, s{sC}, -v{vMc}")
        for r in range(4):
            e(f"v_exp_f32 v{vS+r}, v{vS+r}")
        e("s_nop 0")
        for r in range(4):
            e(f"v_cvt_pk_bf16_f32 v{vP+r}, v{vS+r}, v{vS+r}")
        e(f"v_add_f32 v{vT0}, v{vS}, v{vS+1}")
        e(f"v_add_f32 v{vT1}, v{vS+2}, v{vS+3}")
        e(f"v_cndmask_b32 v{vP+4}, v{vP+1}, v{vP}, s[{sLo8}:{sLo8+1}]")
        e(f"v_cndmask_b32 v{vP+5}, v{vP+3}, v{vP+2}, s[{sLo8}:{sLo8+1}]")
        e(f"v_add_f32 v{vT0}, v{vT0}, v{vT1}")
        e(f"v_add_f32 v{vL}, v{vL}, v{vT0}")
        seq = [(0, vAcc0, 0), (1, vAcc0, 1), (2, vAcc0, 2), (3, vAcc0, 3), (4, vAcc1, 4), (5, vAcc1, 5)]
        abuf = [vA0, vA1]
        def mkA(n):
            p, acc, vt = seq[n]
            for k in range(4):
                e(f"v_and_b32 v{abuf[n&1]+k}, v{vP+p}, v{vMask+k}")
        mkA(0)
        for n in range(6):
            if n + 1 < 6:
                mkA(n + 1)
            else:
                e("s_nop 1")
            if n == 0:
                e(f"s_waitcnt vmcnt({wV})")
            p, acc, vt = seq[n]
            e(f"v_mfma_f32_16x16x32_bf16 {R4(acc)}, {R4(abuf[n&1])}, {R4(Vb(d,vt))}, {R4(acc)}")
        if do_issue:
            issueV(d)
            e(f"s_add_u32 s{sOff}, s{sOff}, {step}")
    nmain = ntile - depth
    wfull = nld * (2*depth - 1)
    e(f"s_waitcnt vmcnt({6 + 12*(depth-1)})")
    pre = nmain % depth
    dd = 0
    for x in range(pre):
        tile(x, wfull, wfull, True, f"p{x}")
    rot = pre
    if nmain > 0:
        e(f"s_mov_b32 s{sCnt}, {nmain // depth}")
        e.label("L_loop")
        for d in range(depth):
            tile((d + rot) % depth, wfull, wfull, True, f"m{d}")
        e(f"s_sub_u32 s{sCnt}, s{sCnt}, 1")
        e(f"s_cmp_lg_u32 s{sCnt}, 0")
        e("s_cbranch_scc1 L_loop")
    for x in range(depth):
        d = (x + rot) % depth
        rem = depth - 1 - x
        wK = nld * (2*rem + 1)
        wV = nld * (2*rem)
        tile(d, wK, wV, False, f"e{x}")
    if stamp or dbgstamp:
        e("s_memrealtime s[42:43]")
    e.c("reduce l across groups")
    e(f"v_mov_b32 v{vT0}, v{vL}")
    e("s_nop 1")
    e(f"v_permlane32_swap_b32 v{vL}, v{vT0}")
    e(f"v_add_f32 v{vL}, v{vL}, v{vT0}")
    e(f"v_mov_b32 v{vT0}, v{vL}")
    e("s_nop 1")
    e(f"v_permlane16_swap_b32 v{vL}, v{vT0}")
    e(f"v_add_f32 v{vL}, v{vL}, v{vT0}")
    e(f"s_mul_i32 s{sTmp}, s{sWave}, {LSTRIDE}")
    e(f"v_and_b32 v{vT0}, 15, v{vLane}")
    e(f"v_lshrrev_b32 v{vT1}, 4, v{vLane}")
    e(f"v_lshlrev_b32 v{vT2}, 5, v{vT0}")
    e(f"v_lshl_add_u32 v{vT2}, v{vT1}, 4, v{vT2}")
    e(f"v_add_u32 v{vT2}, s{sTmp}, v{vT2}")
    e(f"v_lshrrev_b32 v{vT3}, 3, v{vT0}")
    e(f"v_lshlrev_b32 v{vT3}, 8, v{vT3}")
    e(f"v_and_b32 v{vT0}, 7, v{vT0}")
    e(f"v_lshl_add_u32 v{vT3}, v{vT0}, 5, v{vT3}")
    e(f"v_and_b32 v{vT1}, 1, v{vT1}")
    e(f"v_lshl_add_u32 v{vT3}, v{vT1}, 4, v{vT3}")
    e(f"v_add_u32 v{vT3}, s{sTmp}, v{vT3}")
    e(f"v_add_u32 v{vT3}, 512, v{vT3}")
    e(f"v_mov_b32 v{vT0}, s{sTmp}")
    e(f"v_mov_b32 v{vS}, v{vM}")
    e(f"v_mov_b32 v{vS+1}, v{vL}")
    e("s_nop 7")
    e("s_mov_b32 exec_lo, -1")
    e("s_mov_b32 exec_hi, 0")
    e(f"ds_write_b128 v{vT2}, {R4(vAcc0)}")
    e("s_mov_b32 exec_lo, 0x00ff00ff")
    e("s_mov_b32 exec_hi, 0xff00ff00")
    e(f"ds_write_b128 v{vT3}, {R4(vAcc1)}")
    e("s_mov_b64 exec, 1")
    e(f"ds_write_b64 v{vT0}, v[{vS}:{vS+1}] offset:1024")
    e("s_mov_b64 exec, -1")
    e("s_waitcnt lgkmcnt(0)")
    e("s_barrier")
    e(f"s_cmp_lg_u32 s{sWave}, 0")
    e("s_cbranch_scc1 L_end")
    vX = vBuf
    e(f"v_lshlrev_b32 v{vT0}, 4, v{vLane}")
    e(f"v_mov_b32 v{vT1}, 0")
    for w in range(nw):
        e(f"ds_read_b128 {R4(vX+12*w)}, v{vT0} offset:{w*LSTRIDE}")
        e(f"ds_read_b128 {R4(vX+12*w+4)}, v{vT0} offset:{w*LSTRIDE+256}")
        e(f"ds_read_b64 v[{vX+12*w+8}:{vX+12*w+9}], v{vT1} offset:{w*LSTRIDE+1024}")
        if w % 4 == 3:
            e("s_waitcnt lgkmcnt(0)")
    e("s_waitcnt lgkmcnt(0)")
    e(f"v_cmp_le_u32 vcc, 32, v{vLane}")
    e(f"v_mov_b32 v{vM}, v{vX+8}")
    for w in range(1, nw):
        e(f"v_max_f32 v{vM}, v{vM}, v{vX+12*w+8}")
    e(f"v_mul_f32 v{vMc}, s{sC}, v{vM}")
    e(f"v_mov_b32 v{vL}, 0")
    for r in range(4):
        e(f"v_mov_b32 v{vAcc0+r}, 0")
    for w in range(nw):
        b = vX + 12*w
        e(f"v_fma_f32 v{vT0}, v{b+8}, s{sC}, -v{vMc}")
        e(f"v_exp_f32 v{vT0}, v{vT0}")
        for r in range(4):
            e(f"v_cndmask_b32 v{b+4+r}, 0, v{b+4+r}, vcc")
        for r in range(4):
            e(f"v_add_f32 v{b+r}, v{b+r}, v{b+4+r}")
        e(f"v_fma_f32 v{vL}, v{vT0}, v{b+9}, v{vL}")
        for r in range(4):
            e(f"v_fma_f32 v{vAcc0+r}, v{vT0}, v{b+r}, v{vAcc0+r}")
    WS0 = 1 << 20
    e(f"s_lshl_b32 s{sTmp}, s2, 10")
    e(f"s_add_u32 s{sTmp}, s{sTmp}, {WS0}")
    e(f"s_add_u32 s14, s14, s{sTmp}")
    e(f"s_addc_u32 s15, s15, 0")
    e(f"v_mov_b32 v{vS}, v{vAcc0}")
    e(f"v_mov_b32 v{vS+1}, v{vAcc0+1}")
    e(f"v_mov_b32 v{vS+2}, v{vAcc0+2}")
    e(f"v_mov_b32 v{vS+3}, v{vAcc0+3}")
    e("s_mov_b32 exec_lo, 0")
    e("s_mov_b32 exec_hi, 0x10000")
    e(f"v_mov_b32 v{vS}, v{vM}")
    e(f"v_mov_b32 v{vS+1}, v{vL}")
    e("s_mov_b32 exec_lo, -1")
    e("s_mov_b32 exec_hi, 0x1ffff")
    e(f"v_lshlrev_b32 v{vT0}, 4, v{vLane}")
    e(f"global_store_dwordx4 v{vT0}, {R4(vS)}, s[14:15] sc0 sc1")
    e("s_waitcnt vmcnt(0)")
    e(f"s_lshr_b32 s{sTmp}, s{sH}, 2")
    e(f"s_lshl_b32 s{sTmp}, s{sTmp}, 2")
    e(f"s_add_u32 s{sTmp}, s{sTmp}, 128")
    e(f"s_and_b32 s{sTmp+1}, s{sH}, 3")
    e(f"s_lshl_b32 s{sTmp+1}, s{sTmp+1}, 3")
    e(f"s_lshl_b32 s38, 1, s{sTmp+1}")
    e("s_mov_b64 exec, 1")
    e(f"v_mov_b32 v{vT1}, s{sTmp}")
    e(f"v_mov_b32 v{vT2}, s38")
    e(f"global_atomic_add v{vT3}, v{vT1}, v{vT2}, s[12:13] sc0")
    e("s_waitcnt vmcnt(0)")
    e(f"v_readfirstlane_b32 s38, v{vT3}")
    e(f"s_lshr_b32 s38, s38, s{sTmp+1}")
    e(f"s_and_b32 s38, s38, 0xff")
    e(f"s_cmp_lg_u32 s38, {nsplit-1}")
    e("s_cbranch_scc1 L_fin")
    assert nsplit == 2
    e("s_mov_b32 exec_lo, -1")
    e("s_mov_b32 exec_hi, 0x1ffff")
    e(f"s_and_b32 s38, s2, 1")
    e(f"s_lshl_b32 s38, s38, 11")
    e(f"s_sub_u32 s38, 1024, s38")
    e(f"s_ashr_i32 s39, s38, 31")
    e(f"s_add_u32 s14, s14, s38")
    e(f"s_addc_u32 s15, s15, s39")
    e(f"global_load_dwordx4 {R4(vD)}, v{vT0}, s[14:15] sc0 sc1")
    e("s_waitcnt vmcnt(0)")
    e(f"v_readlane_b32 s38, v{vD}, 48")
    e(f"v_readlane_b32 s39, v{vD+1}, 48")
    e("s_mov_b64 exec, -1")
    e("s_nop 1")
    e(f"v_max_f32 v{vT1}, s38, v{vM}")
    e(f"v_mul_f32 v{vT2}, s{sC}, v{vT1}")
    e(f"v_fma_f32 v{vT3}, v{vM}, s{sC}, -v{vT2}")
    e(f"v_mov_b32 v{vT1}, s38")
    e(f"v_fma_f32 v{vT2}, v{vT1}, s{sC}, -v{vT2}")
    e(f"v_exp_f32 v{vT3}, v{vT3}")
    e(f"v_exp_f32 v{vT2}, v{vT2}")
    e("s_nop 0")
    e(f"v_mul_f32 v{vL}, v{vT3}, v{vL}")
    e(f"v_fma_f32 v{vL}, v{vT2}, s39, v{vL}")
    e(f"v_rcp_f32 v{vL}, v{vL}")
    e("s_nop 0")
    e(f"v_mul_f32 v{vT3}, v{vT3}, v{vL}")
    e(f"v_mul_f32 v{vT2}, v{vT2}, v{vL}")
    for r in range(4):
        e(f"v_mul_f32 v{vAcc0+r}, v{vT3}, v{vAcc0+r}")
    for r in range(4):
        e(f"v_fma_f32 v{vAcc0+r}, v{vT2}, v{vD+r}, v{vAcc0+r}")
    e(f"v_cvt_pk_bf16_f32 v{vS}, v{vAcc0}, v{vAcc0+1}")
    e(f"v_cvt_pk_bf16_f32 v{vS+1}, v{vAcc0+2}, v{vAcc0+3}")
    e(f"s_mul_i32 s38, s{sH}, 384")
    e(f"s_add_u32 s10, s10, s38")
    e(f"s_addc_u32 s11, s11, 0")
    e(f"v_lshlrev_b32 v{vT0}, 3, v{vLane}")
    e("s_mov_b32 exec_lo, -1")
    e("s_mov_b32 exec_hi, 0xffff")
    e(f"global_store_dwordx2 v{vT0}, v[{vS}:{vS+1}], s[10:11]")
    e.label("L_fin")
    if dbgstamp:
        e("s_waitcnt vmcnt(0)")
        e("s_memrealtime s[44:45]")
        e("s_waitcnt lgkmcnt(0)")
        e("s_mov_b64 exec, 1")
        e("s_not_b32 s40, s40")
        e("s_not_b32 s46, s42")
        e("v_mov_b32 v20, s40")
        e("v_mov_b32 v21, s44")
        e("v_mov_b32 v22, 0")
        e("v_mov_b32 v23, s42")
        e("v_mov_b32 v24, s46")
        e("global_atomic_umax v22, v20, s[12:13]")
        e("global_atomic_umax v22, v21, s[12:13] offset:4")
        e("global_atomic_umax v22, v23, s[12:13] offset:8")
        e("global_atomic_umax v22, v24, s[12:13] offset:12")
    if stamp:
        e("s_mov_b64 exec, -1")
        e("s_load_dwordx2 s[14:15], s[0:1], 40")
        e("s_memrealtime s[44:45]")
        e("s_getreg_b32 s46, hwreg(HW_REG_XCC_ID)")
        e("s_waitcnt lgkmcnt(0)")
        e("s_lshl_b32 s47, s2, 5")
        e("v_mov_b32 v20, s40")
        e("v_mov_b32 v21, s41")
        e("v_mov_b32 v22, s44")
        e("v_mov_b32 v23, s45")
        e("v_mov_b32 v24, s46")
        e("v_mov_b32 v25, s42")
        e("v_mov_b32 v26, s47")
        e("s_mov_b64 exec, 1")
        e("global_store_dwordx4 v26, v[20:23], s[14:15]")
        e("global_store_dwordx2 v26, v[24:25], s[14:15] offset:16")
    e("s_branch L_end")
    for tag in rare_blocks:
        e.label(f"L_rare_{tag}")
        e(f"v_mov_b32 v{vT1}, v{vT0}")
        e("s_nop 1")
        e(f"v_permlane32_swap_b32 v{vT0}, v{vT1}")
        e(f"v_max_f32 v{vT0}, v{vT0}, v{vT1}")
        e(f"v_mov_b32 v{vT1}, v{vT0}")
        e("s_nop 1")
        e(f"v_permlane16_swap_b32 v{vT0}, v{vT1}")
        e(f"v_max_f32 v{vT0}, v{vT0}, v{vT1}")
        e(f"v_max_f32 v{vM}, v{vM}, v{vT0}")
        e(f"v_mul_f32 v{vT1}, s{sC}, v{vM}")
        e(f"v_sub_f32 v{vT0}, v{vMc}, v{vT1}")
        e(f"v_exp_f32 v{vT0}, v{vT0}")
        e(f"v_mov_b32 v{vMc}, v{vT1}")
        for r in range(8):
            e(f"v_mul_f32 v{vAcc0+r}, v{vT0}, v{vAcc0+r}")
        e(f"v_mul_f32 v{vL}, v{vT0}, v{vL}")
        e(f"s_branch L_back_{tag}")
    e.label("L_end")
    e("s_endpgm")
    e.o.append('.section .rodata,"a"')
    e.o.append(".p2align 6")
    e.o.append(f".amdhsa_kernel {KNAME}")
    e.o.append(f"  .amdhsa_next_free_vgpr {nvgpr}")
    e.o.append("  .amdhsa_next_free_sgpr 64")
    e.o.append(f"  .amdhsa_accum_offset {(nvgpr+3)//4*4}")
    e.o.append("  .amdhsa_group_segment_fixed_size 0")
    e.o.append("  .amdhsa_kernarg_size 48")
    e.o.append("  .amdhsa_user_sgpr_count 2")
    e.o.append("  .amdhsa_user_sgpr_kernarg_segment_ptr 1")
    e.o.append("  .amdhsa_system_sgpr_workgroup_id_x 1")
    e.o.append(".end_amdhsa_kernel")
    return HEADER + e.text()

if __name__ == "__main__":
    import argparse
    ap = argparse.ArgumentParser()
    ap.add_argument("-o", default="/dev/stdout")
    ap.add_argument("--nw", type=int, default=4)
    ap.add_argument("--depth", type=int, default=2)
    ap.add_argument("--pol", default="nt")
    ap.add_argument("--stamp", action="store_true")
    ap.add_argument("--dbgstamp", action="store_true")
    ap.add_argument("--codepf", action="store_true")
    a = ap.parse_args()
    open(a.o, "w").write(gen(nw=a.nw, depth=a.depth, pol=a.pol, stamp=a.stamp, dbgstamp=a.dbgstamp, codepf=a.codepf))
```

```python
import sys, math, struct

KNAME = "standalone__softmax_full_bidir__decode_kernel"
HEADER = """; Kernarg layout for this problem (48 bytes, ptrs only, base s[0:1]):
"""
TENSOR_BYTES = 128 * 4096 * 384
HEAD_BYTES = 4096 * 384
TILE = 6144
NT = 256
CSCALE = (192 ** -0.5) * math.log2(math.e)
SLOT0 = 2 << 20
SLOTSZ = 1024
LSTRIDE = 1088

def f2u(x):
    return struct.unpack("<I", struct.pack("<f", x))[0]

class E:
    def __init__(self):
        self.o = []
    def __call__(self, s):
        self.o.append("  " + s)
    def label(self, s):
        self.o.append(s + ":")
    def c(self, s):
        self.o.append("  ; " + s)
    def text(self):
        return "\n".join(self.o) + "\n"

def gen(NG=8, NS=2, depth=1, pol="nt", stamp=False, dbgstamp=False, codepf=True, warm=False, bound=False, prof=False, bal=True, pollsleep=4, phst=False, sc='sc1', clrmode=0, kpool=0, early=False, nocomp=0, nopub=0):
    nwg = 256
    P = NG // 2
    G = NG * NS
    assert NT % G == 0
    TPP = NT // G
    NTOT = TPP * P
    assert 0 <= kpool <= TPP
    NSTAT = NTOT - kpool
    POOL = kpool * G
    lgNG = int(math.log2(NG)); assert 1 << lgNG == NG
    lgTPP = int(math.log2(TPP)); assert 1 << lgTPP == TPP
    nw = NS + 1
    lds = LSTRIDE * NS * 2 + 256
    e = E()
    vLane = 0
    vKo1, vKo2, vVo1, vVo2 = 1, 2, 3, 4
    vM, vMc, vL = 5, 6, 7
    vT0, vT1, vT2, vT3 = 8, 9, 10, 11
    vMask = 12
    vQ1, vQ2a, vQ2b = 16, 20, 24
    vAcc0, vAcc1 = 28, 32
    vD = 36
    vS = 52
    vP = 56
    vLa0, vLa1 = 62, 63
    vA0, vA1 = 64, 68
    vBuf = 72
    nslot = 2 if early else depth
    if early: assert depth == 1
    vQs = vBuf + 48 * nslot
    nvgpr = vQs + 12 * (P - 1)
    nvgpr = max(nvgpr, 72 + 4*NG + 8, 72 + 12*NS + 8)
    def Kb(d, t): return vBuf + 48*d + 4*t
    def Vb(d, t): return vBuf + 48*d + 24 + 4*t
    def R4(r): return f"v[{r}:{r+3}]"
    sK, sV, sQ = 16, 20, 24
    sOff, sN, sC, sWave = 28, 29, 30, 31
    sLo8 = 32
    sTmp = 34
    sH0, sMb, sLds, sGrp = 36, 37, 38, 39
    sCtr = 52
    sRaw, sPoolB, sFinal = 54, 55, 56
    sVal = 64
    CTR0 = 1 << 20
    sTens = 60
    sT2 = 62
    sSlot = 58
    e.o.append("; @launch grid=(%d,1,1) block=(%d,1,1) lds=%d" % (nwg, nw*64, lds))
    e.o.append('.amdgcn_target "amdgcn-amd-amdhsa--gfx950"')
    e.o.append(".text")
    e.o.append(f".globl {KNAME}")
    e.o.append(".p2align 8")
    e.o.append(f".type {KNAME},@function")
    e.label(KNAME)
    e(f"s_cmp_ge_u32 s2, {nwg}")
    e("s_cbranch_scc1 L_end")
    e("s_load_dwordx8 s[4:11], s[0:1], 0")
    e("s_load_dwordx4 s[12:15], s[0:1], 32")
    if stamp or dbgstamp:
        e("s_memrealtime s[40:41]")
    e(f"v_lshrrev_b32 v{vT0}, 6, v0")
    e(f"v_and_b32 v{vLane}, 63, v0")
    e(f"v_readfirstlane_b32 s{sWave}, v{vT0}")
    e(f"s_lshr_b32 s{sGrp}, s2, {lgNG}")
    e(f"s_and_b32 s{sMb}, s2, {NG-1}")
    e(f"s_mul_i32 s{sH0}, s{sGrp}, {P}")
    e(f"s_mov_b32 s{sC}, {f2u(CSCALE):#x}")
    e(f"s_cmp_eq_u32 s{sWave}, {NS}")
    e("s_cbranch_scc1 L_service")
    e(f"v_and_b32 v{vT0}, 15, v{vLane}")
    e(f"v_lshrrev_b32 v{vT1}, 4, v{vLane}")
    e(f"v_lshrrev_b32 v{vT2}, 2, v{vT0}")
    e(f"v_mul_u32_u24 v{vT2}, 1536, v{vT2}")
    e(f"v_and_b32 v{vT3}, 3, v{vLane}")
    e(f"v_lshl_add_u32 v{vT2}, v{vT3}, 4, v{vT2}")
    e(f"v_lshl_add_u32 v{vKo1}, v{vT1}, 6, v{vT2}")
    e(f"v_lshrrev_b32 v{vKo2}, 1, v{vT1}")
    e(f"v_mul_u32_u24 v{vKo2}, 384, v{vKo2}")
    e(f"v_add_u32 v{vKo2}, v{vKo2}, v{vT2}")
    e(f"v_and_b32 v{vT2}, 1, v{vT1}")
    e(f"v_lshl_add_u32 v{vKo2}, v{vT2}, 6, v{vKo2}")
    e(f"v_add_u32 v{vKo2}, 256, v{vKo2}")
    if bal and NS == 2:
        e(f"s_lshr_b32 s{sOff}, s{sMb}, 2")
        e(f"s_lshl_b32 s{sOff}, s{sOff}, 3")
        e(f"s_and_b32 s{sTmp}, s{sMb}, 3")
        e(f"s_add_u32 s{sOff}, s{sOff}, s{sTmp}")
        e(f"s_lshl2_add_u32 s{sOff}, s{sWave}, s{sOff}")
    elif bal and NS == 4:
        e(f"s_lshr_b32 s{sOff}, s{sMb}, 1")
        e(f"s_lshl_b32 s{sOff}, s{sOff}, 3")
        e(f"s_and_b32 s{sTmp}, s{sMb}, 1")
        e(f"s_lshl_b32 s{sTmp}, s{sTmp}, 1")
        e(f"s_add_u32 s{sOff}, s{sOff}, s{sTmp}")
        e(f"s_and_b32 s{sTmp}, s{sWave}, 1")
        e(f"s_add_u32 s{sOff}, s{sOff}, s{sTmp}")
        e(f"s_lshr_b32 s{sTmp}, s{sWave}, 1")
        e(f"s_lshl2_add_u32 s{sOff}, s{sTmp}, s{sOff}")
    else:
        e(f"s_mul_i32 s{sOff}, s{sMb}, {NS}")
        e(f"s_add_u32 s{sOff}, s{sOff}, s{sWave}")
    e(f"s_lshl_b32 s{sTmp}, s{sH0}, 8")
    e(f"s_add_u32 s{sOff}, s{sOff}, s{sTmp}")
    e(f"s_mul_i32 s{sOff}, s{sOff}, {TILE}")
    e(f"s_mov_b32 s{sTens}, {TENSOR_BYTES}")
    e(f"s_mov_b32 s{sK+2}, s{sTens}")
    e(f"s_mov_b32 s{sK+3}, 0x20000")
    e("s_waitcnt lgkmcnt(0)")
    e(f"s_mov_b32 s{sK}, s6")
    e(f"s_and_b32 s{sK+1}, s7, 0xffff")
    def issueK(d):
        for R in range(4):
            e(f"buffer_load_dwordx4 {R4(Kb(d,R))}, v{vKo1}, s[{sK}:{sK+3}], s{sOff} offen offset:{R*384} {pol}")
        for u in range(2):
            e(f"buffer_load_dwordx4 {R4(Kb(d,4+u))}, v{vKo2}, s[{sK}:{sK+3}], s{sOff} offen offset:{u*768} {pol}")
    def issueV(d):
        for r in range(4):
            e(f"buffer_load_dwordx4 {R4(Vb(d,r))}, v{vVo1}, s[{sV}:{sV+3}], s{sOff} offen offset:{r*384} {pol}")
        for u in range(2):
            e(f"buffer_load_dwordx4 {R4(Vb(d,4+u))}, v{vVo2}, s[{sV}:{sV+3}], s{sOff} offen offset:{u*768} {pol}")
    issueK(0)
    e(f"v_mul_u32_u24 v{vT2}, 1536, v{vT1}")
    e(f"v_lshl_add_u32 v{vVo1}, v{vT0}, 4, v{vT2}")
    e(f"v_lshrrev_b32 v{vVo2}, 3, v{vT0}")
    e(f"v_mul_u32_u24 v{vVo2}, 384, v{vVo2}")
    e(f"v_add_u32 v{vVo2}, v{vVo2}, v{vT2}")
    e(f"v_and_b32 v{vT2}, 7, v{vLane}")
    e(f"v_lshl_add_u32 v{vVo2}, v{vT2}, 4, v{vVo2}")
    e(f"v_add_u32 v{vVo2}, 256, v{vVo2}")
    e(f"s_mov_b32 s{sV}, s8")
    e(f"s_and_b32 s{sV+1}, s9, 0xffff")
    e(f"s_mov_b32 s{sV+2}, s{sTens}")
    e(f"s_mov_b32 s{sV+3}, 0x20000")
    e(f"v_lshlrev_b32 v{vT2}, 4, v{vT3}")
    e(f"v_lshl_add_u32 v{vD}, v{vT1}, 6, v{vT2}")
    e(f"v_and_b32 v{vD+1}, 1, v{vT1}")
    e(f"v_lshl_add_u32 v{vD+1}, v{vD+1}, 6, v{vT2}")
    e(f"v_add_u32 v{vD+1}, 256, v{vD+1}")
    e(f"v_mov_b32 v{vD+2}, 0x40000000")
    e(f"v_cmp_gt_u32 vcc, 32, v{vLane}")
    e(f"s_mul_i32 s{sTmp}, s{sH0}, 384")
    e(f"s_add_u32 s{sQ}, s4, s{sTmp}")
    e(f"v_cndmask_b32 v{vD+3}, v{vD+2}, v{vD+1}, vcc")
    e(f"v_cndmask_b32 v{vD+2}, v{vD+1}, v{vD+2}, vcc")
    e(f"s_addc_u32 s{sQ+1}, s5, 0")
    e(f"s_and_b32 s{sQ+1}, s{sQ+1}, 0xffff")
    e(f"s_mov_b32 s{sQ+2}, {384*P}")
    e(f"s_mov_b32 s{sQ+3}, 0x20000")
    e(f"buffer_load_dwordx4 {R4(vQ1)}, v{vD}, s[{sQ}:{sQ+3}], 0 offen")
    e(f"buffer_load_dwordx4 {R4(vQ2a)}, v{vD+3}, s[{sQ}:{sQ+3}], 0 offen")
    e(f"buffer_load_dwordx4 {R4(vQ2b)}, v{vD+2}, s[{sQ}:{sQ+3}], 0 offen")
    issueV(0)
    for d in range(1, depth):
        e(f"s_add_u32 s{sOff}, s{sOff}, {G*TILE}")
        issueK(d); issueV(d)
    for p in range(1, P):
        b = vQs + 12*(p-1)
        e(f"s_movk_i32 s{sTmp}, {384*p}")
        e(f"buffer_load_dwordx4 {R4(b)}, v{vD}, s[{sQ}:{sQ+3}], s{sTmp} offen")
        e(f"buffer_load_dwordx4 {R4(b+4)}, v{vD+3}, s[{sQ}:{sQ+3}], s{sTmp} offen")
        e(f"buffer_load_dwordx4 {R4(b+8)}, v{vD+2}, s[{sQ}:{sQ+3}], s{sTmp} offen")
    nq = 3 * (P - 1)
    e(f"v_mov_b32 v{vM}, 0xff7fffff")
    e(f"v_mov_b32 v{vMc}, 0xff7fffff")
    e(f"v_mov_b32 v{vL}, 0")
    for r in range(8):
        e(f"v_mov_b32 v{vAcc0+r}, 0")
    e(f"v_and_b32 v{vT2}, 1, v{vLane}")
    e(f"v_lshlrev_b32 v{vT2}, 4, v{vT2}")
    e(f"v_mov_b32 v{vT3}, 0xffff")
    e(f"v_lshlrev_b32 v{vT2}, v{vT2}, v{vT3}")
    e(f"v_bfe_u32 v{vT3}, v{vLane}, 1, 2")
    for k in range(4):
        e(f"v_cmp_eq_u32 vcc, {k}, v{vT3}")
        e("s_nop 1")
        e(f"v_cndmask_b32 v{vMask+k}, 0, v{vT2}, vcc")
    e(f"v_cmp_gt_u32 s[{sLo8}:{sLo8+1}], 8, v{vT0}")
    e(f"s_mul_i32 s{sLds}, s{sWave}, {LSTRIDE}")
    e(f"v_lshlrev_b32 v{vLa0}, 5, v{vT0}")
    e(f"v_lshl_add_u32 v{vLa0}, v{vT1}, 4, v{vLa0}")
    e(f"v_add_u32 v{vLa0}, s{sLds}, v{vLa0}")
    e(f"v_lshrrev_b32 v{vLa1}, 3, v{vT0}")
    e(f"v_lshlrev_b32 v{vLa1}, 8, v{vLa1}")
    e(f"v_and_b32 v{vT2}, 7, v{vT0}")
    e(f"v_lshl_add_u32 v{vLa1}, v{vT2}, 5, v{vLa1}")
    e(f"v_and_b32 v{vT2}, 1, v{vT1}")
    e(f"v_lshl_add_u32 v{vLa1}, v{vT2}, 4, v{vLa1}")
    e(f"v_add_u32 v{vLa1}, s{sLds}, v{vLa1}")
    e(f"v_add_u32 v{vLa1}, 512, v{vLa1}")
    e(f"s_mov_b32 s{sN}, 0")
    if kpool:
        e(f"s_lshl_b32 s{sTmp}, s{sGrp}, 8")
        e(f"s_add_u32 s{sTmp}, s{sTmp}, {CTR0}")
        e(f"s_add_u32 s{sCtr}, s14, s{sTmp}")
        e(f"s_addc_u32 s{sCtr+1}, s15, 0")
        e(f"s_add_u32 s{sPoolB}, s{sH0}, {P-1}")
        e(f"s_mul_i32 s{sPoolB}, s{sPoolB}, {HEAD_BYTES}")
        e(f"s_add_u32 s{sPoolB}, s{sPoolB}, {(TPP-kpool)*G*TILE}")
        e(f"s_mov_b32 s{sFinal}, 0")
        for d in range(nslot):
            e(f"s_mov_b32 s{sVal+d}, 1")
    wfull = 6 * (2*depth - 1)
    e(f"s_waitcnt vmcnt({6 + 12*(depth-1) + nq})")
    if prof:
        for r in (72, 73, 78, 79): e(f"s_mov_b32 s{r}, 0")
        e("s_memtime s[80:81]")
        e("s_waitcnt lgkmcnt(0)")
    rare_blocks = []
    dyn_blocks = []
    first = [True]
    e.label("L_loop")
    for d in range(nslot):
        tag = f"m{d}"
        nd = (d + 1) % nslot if early else d
        def t0():
            if prof:
                e("s_memtime s[74:75]")
                e("s_waitcnt lgkmcnt(0)")
        def t1(acc):
            if prof:
                e("s_memtime s[76:77]")
                e("s_waitcnt lgkmcnt(0)")
                e("s_sub_u32 s76, s76, s74")
                e(f"s_add_u32 s{acc}, s{acc}, s76")
        def prefetchK():
            if kpool:
                e(f"s_cmpk_lt_u32 s{sN}, {NSTAT - depth}")
                e(f"s_cbranch_scc0 L_dyn_{tag}")
                e(f"s_add_u32 s{sOff}, s{sOff}, {G*TILE}")
                e.label(f"L_issue_{tag}")
                issueK(nd)
                e(f"s_cmpk_ge_u32 s{sN}, {NSTAT - depth - 1}")
                e(f"s_cbranch_scc1 L_claim_{tag}")
                e.label(f"L_claimed_{tag}")
                dyn_blocks.append((tag, nd))
            else:
                e(f"s_add_u32 s{sOff}, s{sOff}, {G*TILE}")
                e(f"s_cmpk_lt_u32 s{sN}, {NTOT - depth}")
                e(f"s_cselect_b32 s{sK+2}, s{sTens}, 0")
                e(f"s_cselect_b32 s{sV+2}, s{sTens}, 0")
                t0()
                issueK(nd)
                t1(78)
        if kpool:
            e(f"s_cmp_eq_u32 s{sVal+d}, 0")
            e("s_cbranch_scc1 L_final")
        t0()
        e(f"s_waitcnt vmcnt({wfull})")
        t1(72)
        if early:
            prefetchK()
        D = [vD + 4*R for R in range(4)]
        for R in range(4):
            e(f"v_mfma_f32_16x16x32_bf16 {R4(D[R])}, {R4(Kb(d,R))}, {R4(vQ1)}, 0")
        for R in range(4):
            q2 = vQ2a if (R & 1) == 0 else vQ2b
            e(f"v_mfma_f32_16x16x32_bf16 {R4(D[R])}, {R4(Kb(d,4+(R>>1)))}, {R4(q2)}, {R4(D[R])}")
        if early:
            e("s_nop 7")
        else:
            prefetchK()
        for b in range(4):
            for R in range(4):
                qp = f"quad_perm:[{b},{b},{b},{b}] row_mask:0xf bank_mask:0xf"
                if b == 0:
                    e(f"v_mov_b32_dpp v{vS+R}, v{D[R]} {qp}")
                else:
                    e(f"v_add_f32_dpp v{vS+R}, v{D[R]+b}, v{vS+R} {qp}")
        e(f"v_max3_f32 v{vT0}, v{vS}, v{vS+1}, v{vS+2}")
        e(f"v_max_f32 v{vT0}, v{vT0}, v{vS+3}")
        e(f"v_cmp_gt_f32 vcc, v{vT0}, v{vM}")
        e(f"s_cbranch_vccnz L_rare_{tag}")
        e.label(f"L_back_{tag}")
        rare_blocks.append(tag)
        for r in range(4):
            e(f"v_fma_f32 v{vS+r}, v{vS+r}, s{sC}, -v{vMc}")
        for r in range(4):
            e(f"v_exp_f32 v{vS+r}, v{vS+r}")
        e("s_nop 0")
        for r in range(4):
            e(f"v_cvt_pk_bf16_f32 v{vP+r}, v{vS+r}, v{vS+r}")
        e(f"v_add_f32 v{vT0}, v{vS}, v{vS+1}")
        e(f"v_add_f32 v{vT1}, v{vS+2}, v{vS+3}")
        e(f"v_cndmask_b32 v{vP+4}, v{vP+1}, v{vP}, s[{sLo8}:{sLo8+1}]")
        e(f"v_cndmask_b32 v{vP+5}, v{vP+3}, v{vP+2}, s[{sLo8}:{sLo8+1}]")
        e(f"v_add_f32 v{vT0}, v{vT0}, v{vT1}")
        e(f"v_add_f32 v{vL}, v{vL}, v{vT0}")
        seq = [(0, vAcc0, 0), (1, vAcc0, 1), (2, vAcc0, 2), (3, vAcc0, 3), (4, vAcc1, 4), (5, vAcc1, 5)]
        abuf = [vA0, vA1]
        def mkA(n):
            p, acc, vt = seq[n]
            for k in range(4):
                e(f"v_and_b32 v{abuf[n&1]+k}, v{vP+p}, v{vMask+k}")
        mkA(0)
        if early:
            t0()
            e(f"s_waitcnt vmcnt({wfull})")
            t1(73)
            issueV(nd)
        for n in range(6):
            if n + 1 < 6:
                mkA(n + 1)
            else:
                e("s_nop 1")
            if n == 0 and not early:
                t0()
                e(f"s_waitcnt vmcnt({wfull})")
                t1(73)
            p, acc, vt = seq[n]
            e(f"v_mfma_f32_16x16x32_bf16 {R4(acc)}, {R4(abuf[n&1])}, {R4(Vb(d,vt))}, {R4(acc)}")
        if not early:
            t0()
            issueV(d)
            t1(79)
        e(f"s_add_u32 s{sN}, s{sN}, 1")
        if d == nslot - 1:
            e(f"s_and_b32 s{sTmp}, s{sN}, {TPP-1}")
            e("s_cbranch_scc1 L_loop")
            if kpool:
                e(f"s_cmpk_gt_u32 s{sN}, {(P-1)*TPP}")
                e("s_cbranch_scc1 L_loop")
                e("s_branch L_phase")
                e.label("L_final")
                e(f"s_mov_b32 s{sFinal}, 1")
    if nocomp:
        i0 = e.o.index("L_loop:")
        body = e.o[i0:]
        keep = []
        for ln in body:
            t = ln.strip()
            if nocomp == 1 and (t.startswith("v_") or t.startswith("s_nop") or "L_rare" in t or "L_back" in t):
                continue
            if nocomp == 2 and t.startswith("v_mfma"):
                continue
            if nocomp == 3 and (t.startswith("v_") and not t.startswith("v_mfma") or "L_rare" in t or "L_back" in t):
                continue
            keep.append(ln)
        e.o = e.o[:i0] + keep
        if nocomp in (1, 3): rare_blocks.clear()
    assert TPP % nslot == 0
    e.label("L_phase")
    if stamp or dbgstamp:
        e("s_memrealtime s[42:43]")
    if phst:
        e("s_waitcnt lgkmcnt(0)")
        e(f"s_mul_i32 s35, s2, {nw}")
        e(f"s_add_u32 s35, s35, s{sWave}")
        e("s_lshl_b32 s35, s35, 6")
        e(f"s_lshr_b32 s{sTmp}, s{sN}, {lgTPP}")
        if kpool:
            e(f"s_cmp_lg_u32 s{sFinal}, 0")
            e(f"s_cselect_b32 s{sTmp}, {P}, s{sTmp}")
        e(f"s_lshl2_add_u32 s35, s{sTmp}, s35")
        e("s_add_u32 s35, s35, 0x90000")
        e("s_mov_b32 s84, s42")
        e(f"v_mov_b32 v{vT0}, s35")
        e(f"v_mov_b32 v{vT1}, s84")
        e("s_mov_b64 exec, 1")
        e(f"global_store_dword v{vT0}, v{vT1}, s[14:15]")
        e("s_mov_b64 exec, -1")
    e(f"v_mov_b32 v{vT0}, v{vL}")
    e("s_nop 1")
    e(f"v_permlane32_swap_b32 v{vL}, v{vT0}")
    e(f"v_add_f32 v{vL}, v{vL}, v{vT0}")
    e(f"v_mov_b32 v{vT0}, v{vL}")
    e("s_nop 1")
    e(f"v_permlane16_swap_b32 v{vL}, v{vT0}")
    e(f"v_add_f32 v{vS+1}, v{vL}, v{vT0}")
    e(f"v_mov_b32 v{vS}, v{vM}")
    e(f"v_mov_b32 v{vT0}, s{sLds}")
    e("s_mov_b32 exec_hi, 0")
    e(f"ds_write_b128 v{vLa0}, {R4(vAcc0)}")
    e("s_mov_b32 exec_lo, 0x00ff00ff")
    e("s_mov_b32 exec_hi, 0xff00ff00")
    e(f"ds_write_b128 v{vLa1}, {R4(vAcc1)}")
    e("s_mov_b64 exec, 1")
    e(f"ds_write_b64 v{vT0}, v[{vS}:{vS+1}] offset:1024")
    e("s_mov_b64 exec, -1")
    e(f"s_xor_b32 s{sLds}, s{sLds}, s{sT2}") if False else None
    e("s_waitcnt lgkmcnt(0)")
    e("s_barrier")
    if kpool:
        e(f"s_cmp_lg_u32 s{sFinal}, 0")
    else:
        e(f"s_cmpk_ge_u32 s{sN}, {NTOT}")
    e("s_cbranch_scc1 L_sfin")
    e(f"v_mov_b32 v{vM}, 0xff7fffff")
    e(f"v_mov_b32 v{vMc}, 0xff7fffff")
    e(f"v_mov_b32 v{vL}, 0")
    for r in range(8):
        e(f"v_mov_b32 v{vAcc0+r}, 0")
    e(f"s_lshr_b32 s{sTmp}, s{sN}, {lgTPP}")
    e(f"s_mov_b32 s{sT2}, {(-NS*LSTRIDE) & 0xffffffff}")
    e(f"s_bitcmp1_b32 s{sTmp}, 0")
    e(f"s_cselect_b32 s{sT2}, {NS*LSTRIDE}, s{sT2}")
    e(f"s_add_u32 s{sLds}, s{sLds}, s{sT2}")
    e(f"v_add_u32 v{vLa0}, s{sT2}, v{vLa0}")
    e(f"v_add_u32 v{vLa1}, s{sT2}, v{vLa1}")
    for r in range(12):
        e(f"v_mov_b32 v{vQ1+r}, v{vQs+r}")
    for p in range(1, P-1):
        for r in range(12):
            e(f"v_mov_b32 v{vQs+12*(p-1)+r}, v{vQs+12*p+r}")
    e("s_branch L_loop")
    e.label("L_sfin")
    if prof:
        e("s_memtime s[82:83]")
        e("s_waitcnt lgkmcnt(0)")
        e("s_sub_u32 s82, s82, s80")
        e("s_mov_b64 exec, 1")
        e(f"s_mul_i32 s35, s2, {nw}")
        e(f"s_add_u32 s35, s35, s{sWave}")
        e("s_lshl_b32 s35, s35, 5")
        e("s_add_u32 s35, s35, 0x80000")
        e("v_mov_b32 v20, s72")
        e("v_mov_b32 v21, s73")
        e("v_mov_b32 v22, s78")
        e("v_mov_b32 v23, s79")
        e("v_mov_b32 v24, s82")
        e("v_mov_b32 v26, s35")
        e("global_store_dwordx4 v26, v[20:23], s[14:15]")
        e("global_store_dword v26, v24, s[14:15] offset:16")
        e("s_mov_b64 exec, -1")
    if stamp:
        e("s_waitcnt vmcnt(0)")
        e("s_branch L_stamp")
    e("s_endpgm")
    e.label("L_service")
    if codepf:
        e("s_getpc_b64 s[48:49]")
        e.label("L_pc")
        e(f"s_sub_u32 s48, s48, L_pc-{KNAME}")
        e("s_subb_u32 s49, s49, 0")
        e(f"v_lshlrev_b32 v{vT1}, 7, v{vLane}")
        e(f"v_min_u32 v{vT1}, L_end-{KNAME}, v{vT1}")
        e(f"global_load_dword v{vS}, v{vT1}, s[48:49]")
    e("s_waitcnt lgkmcnt(0)")
    e(f"s_mul_i32 s{sTmp}, s{sH0}, {NG*SLOTSZ}")
    e(f"s_add_u32 s{sTmp}, s{sTmp}, {SLOT0}")
    e(f"s_add_u32 s{sSlot}, s14, s{sTmp}")
    e(f"s_addc_u32 s{sSlot+1}, s15, 0")
    e(f"v_lshlrev_b32 v{vT0}, 4, v{vLane}")
    e(f"s_bitcmp1_b32 s{sMb}, 0")
    e("s_cbranch_scc1 L_noclear")
    e(f"s_lshr_b32 s{sTmp}, s{sMb}, 1")
    e(f"s_mul_i32 s{sT2}, s{sTmp}, {NG*SLOTSZ}")
    e(f"s_add_u32 s{sT2}, s{sSlot}, s{sT2}")
    e(f"s_addc_u32 s{sT2+1}, s{sSlot+1}, 0")
    for r in range(4):
        e(f"v_mov_b32 v{vX0+r}, -1" if False else f"v_mov_b32 v{16+r}, -1")
    e(f"v_mov_b32 v{vT1}, v{vT0}")
    if clrmode == 2:
        for _ in range(4): e("s_sleep 127")
    for p in range(NG):
        if clrmode == 1: continue
        if clrmode == 3:
            e(f"global_store_dwordx4 v{vT1}, v[16:19], s[{sT2}:{sT2+1}]")
            if p + 1 < NG: e(f"v_add_u32 v{vT1}, {SLOTSZ}, v{vT1}")
            continue
        if clrmode == 4 and p > 0: continue
        if clrmode == 5:
            if p == 0: e(f"global_load_dwordx4 v[20:23], v{vT1}, s[{sT2}:{sT2+1}] {sc}")
            continue
        if clrmode == 6:
            if p == 0:
                e(f"v_mov_b32 v20, 240")
                e(f"global_store_dword v20, v16, s[12:13] {sc}")
            continue
        if clrmode == 7:
            if p == 0:
                for _ in range(1): e("s_sleep 100")
                e(f"global_store_dwordx4 v{vT1}, v[16:19], s[{sT2}:{sT2+1}] {sc}")
            continue
        e(f"global_store_dwordx4 v{vT1}, v[16:19], s[{sT2}:{sT2+1}] {sc}")
        if p + 1 < NG:
            e(f"v_add_u32 v{vT1}, {SLOTSZ}, v{vT1}")
    if kpool:
        e(f"s_cmp_lg_u32 s{sMb}, 0")
        e("s_cbranch_scc1 L_noctr")
        e(f"s_lshl_b32 s{sT2}, s{sGrp}, 8")
        e(f"s_add_u32 s{sT2}, s{sT2}, {CTR0}")
        e(f"v_mov_b32 v{vT1}, s{sT2}")
        e(f"v_mov_b32 v{vT2}, 0")
        e("s_mov_b64 exec, 1")
        e(f"global_store_dword v{vT1}, v{vT2}, s[14:15] {sc}")
        e("s_mov_b64 exec, -1")
        e.label("L_noctr")
    e(f"s_add_u32 s{sTmp}, s{sTmp}, s{sH0}")
    e(f"v_mov_b32 v{vT1}, s{sTmp}")
    e(f"v_mov_b32 v{vT2}, 1")
    e("s_waitcnt vmcnt(0)")
    e("s_mov_b64 exec, 1")
    e(f"global_store_byte v{vT1}, v{vT2}, s[12:13] {sc}")
    e("s_mov_b64 exec, -1")
    e.label("L_noclear")
    e("s_waitcnt vmcnt(0)")
    e(f"s_mov_b32 s51, 0")
    e(f"s_mov_b32 s{sN}, 0")
    e(f"s_mov_b32 s{sLds}, 0")
    sDry = 57
    vKeep = 16
    vX = 72
    if warm:
        e(f"s_mov_b32 s{sDry}, 1")
        e("s_branch L_pub")
    e.label("L_sphase")
    e("s_barrier")
    e(f"v_add_u32 v{vT1}, s{sLds}, v{vT0}")
    e(f"v_mov_b32 v{vT2}, s{sLds}")
    for w in range(NS):
        e(f"ds_read_b128 {R4(vX+12*w)}, v{vT1} offset:{w*LSTRIDE}")
        e(f"ds_read_b128 {R4(vX+12*w+4)}, v{vT1} offset:{w*LSTRIDE+256}")
        e(f"ds_read_b64 v[{vX+12*w+8}:{vX+12*w+9}], v{vT2} offset:{w*LSTRIDE+1024}")
    e(f"v_cmp_le_u32 vcc, 32, v{vLane}")
    e(f"s_xor_b32 s{sLds}, s{sLds}, {NS*LSTRIDE}")
    for i in range(P-1, 0, -1):
        for r in range(4):
            e(f"v_mov_b32 v{vKeep+4*i+r}, v{vKeep+4*(i-1)+r}")
    e("s_waitcnt lgkmcnt(0)")
    e(f"v_mov_b32 v{vM}, v{vX+8}")
    for w in range(1, NS):
        e(f"v_max_f32 v{vM}, v{vM}, v{vX+12*w+8}")
    e(f"v_mul_f32 v{vMc}, s{sC}, v{vM}")
    for w in range(NS):
        b = vX + 12*w
        e(f"v_fma_f32 v{vT2}, v{b+8}, s{sC}, -v{vMc}")
        e(f"v_exp_f32 v{vT2}, v{vT2}")
        for r in range(4):
            e(f"v_cndmask_b32 v{b+4+r}, 0, v{b+4+r}, vcc")
        for r in range(4):
            e(f"v_add_f32 v{b+r}, v{b+r}, v{b+4+r}")
        if w == 0:
            e(f"v_mul_f32 v{vL}, v{vT2}, v{b+9}")
            for r in range(4):
                e(f"v_mul_f32 v{vKeep+r}, v{vT2}, v{b+r}")
        else:
            e(f"v_fma_f32 v{vL}, v{vT2}, v{b+9}, v{vL}")
            for r in range(4):
                e(f"v_fma_f32 v{vKeep+r}, v{vT2}, v{b+r}, v{vKeep+r}")
    e("s_mov_b32 exec_lo, 0")
    e("s_mov_b32 exec_hi, 0x10000")
    e(f"v_mov_b32 v{vKeep}, v{vM}")
    e(f"v_mov_b32 v{vKeep+1}, v{vL}")
    e(f"v_mov_b32 v{vKeep+2}, v{vM}")
    e(f"v_mov_b32 v{vKeep+3}, v{vL}")
    e("s_mov_b64 exec, -1")
    e(f"s_add_u32 s{sN}, s{sN}, 1")
    e(f"s_cmp_ge_u32 s{sN}, {P}")
    e("s_cbranch_scc1 L_pub0")
    e("s_cmp_lg_u32 s51, 0")
    e("s_cbranch_scc1 L_sphase")
    e(f"v_and_b32 v{vT1}, {P-1}, v{vLane}")
    e(f"v_add_u32 v{vT1}, s{sH0}, v{vT1}")
    if bound: e("s_mov_b32 s50, 20000")
    e.label("L_rdy")
    if bound:
        e("s_sub_u32 s50, s50, 1")
        e("s_cbranch_scc1 L_rdy_set")
    e(f"global_load_ubyte v{vT2}, v{vT1}, s[12:13] {sc}")
    e("s_waitcnt vmcnt(0)")
    e(f"v_cmp_eq_u32 vcc, 0, v{vT2}")
    e("s_cbranch_vccz L_rdy_set")
    e("s_sleep 8")
    e("s_branch L_rdy")
    e.label("L_rdy_set")
    e("s_mov_b32 s51, 1")
    e("s_branch L_sphase")
    e.label("L_pub0")
    if phst:
        e("s_memrealtime s[84:85]")
    e(f"s_mov_b32 s{sDry}, 0")
    e.label("L_pub")
    e(f"s_lshl_b32 s{sTmp}, s{sMb}, 10")
    e(f"v_add_u32 v{vT1}, s{sTmp}, v{vT0}")
    e(f"s_add_u32 s{sT2}, s{sSlot}, {(P-1)*NG*SLOTSZ}")
    e(f"s_addc_u32 s{sT2+1}, s{sSlot+1}, 0")
    e("s_mov_b32 exec_hi, 0x1ffff")
    for i in range(P):
        if warm:
            e(f"s_cmp_lg_u32 s{sDry}, 0")
            e(f"s_cbranch_scc1 L_pskip{i}")
        if not nopub:
            e(f"global_store_dwordx4 v{vT1}, {R4(vKeep+4*i)}, s[{sT2}:{sT2+1}] {sc}")
        if warm:
            e.label(f"L_pskip{i}")
        if i + 1 < P:
            e(f"s_sub_u32 s{sT2}, s{sT2}, {NG*SLOTSZ}")
            e(f"s_subb_u32 s{sT2+1}, s{sT2+1}, 0")
    e("s_mov_b64 exec, -1")
    if phst:
        e("s_memrealtime s[86:87]")
    e(f"s_bitcmp1_b32 s{sMb}, 0")
    e("s_cbranch_scc1 L_sdone")
    e(f"s_lshr_b32 s{sN}, s{sMb}, 1")
    e(f"s_mul_i32 s{sTmp}, s{sN}, {NG*SLOTSZ}")
    e(f"s_add_u32 s{sTmp+0}, s{sTmp}, 0")
    sSC = 58 + 8
    e(f"s_add_u32 s{sSC}, s{sSlot}, s{sTmp}")
    e(f"s_addc_u32 s{sSC+1}, s{sSlot+1}, 0")
    e(f"v_and_b32 v{vT1}, {NG-1}, v{vLane}")
    e(f"v_lshlrev_b32 v{vT1}, 10, v{vT1}")
    e(f"v_min_u32 v{vT2}, 768, v{vT0}")
    if warm:
        e(f"s_cmp_lg_u32 s{sDry}, 0")
        e("s_cbranch_scc0 L_poll")
        e(f"v_mov_b32 v{vT1}, 0")
        e(f"v_mov_b32 v{vT2}, 0")
    if bound: e("s_mov_b32 s50, 20000")
    e.label("L_poll")
    if bound:
        e("s_sub_u32 s50, s50, 1")
        e("s_cbranch_scc1 L_sdone")
    e(f"global_load_dwordx2 v[{vS}:{vS+1}], v{vT1}, s[{sSC}:{sSC+1}] offset:768 {sc}")
    e("s_waitcnt vmcnt(0)")
    e(f"v_max_u32 v{vL}, v{vS}, v{vS+1}")
    e(f"v_cmp_eq_u32 vcc, -1, v{vL}")
    e("s_cbranch_vccz L_poll2")
    if warm:
        e(f"s_cmp_lg_u32 s{sDry}, 0")
        e("s_cbranch_scc1 L_poll2")
    e(f"s_sleep {pollsleep}")
    e("s_branch L_poll")
    e.label("L_poll2")
    if phst:
        e("s_memrealtime s[88:89]")
    if bound:
        e("s_sub_u32 s50, s50, 1")
        e("s_cbranch_scc1 L_sdone")
    e(f"s_mov_b64 s[{sT2}:{sT2+1}], s[{sSC}:{sSC+1}]")
    for p in range(NG):
        e(f"global_load_dwordx4 {R4(vX+4*p)}, v{vT2}, s[{sT2}:{sT2+1}] offset:{(p%4)*SLOTSZ} {sc}")
        if p % 4 == 3 and p + 1 < NG:
            e(f"s_add_u32 s{sT2}, s{sT2}, {4*SLOTSZ}")
            e(f"s_addc_u32 s{sT2+1}, s{sT2+1}, 0")
    e("s_waitcnt vmcnt(0)")
    e(f"v_mov_b32 v{vL}, 0")
    for p in range(NG):
        e(f"v_max3_u32 v{vL}, v{vX+4*p}, v{vX+4*p+1}, v{vL}")
        e(f"v_max3_u32 v{vL}, v{vX+4*p+2}, v{vX+4*p+3}, v{vL}")
    e(f"v_cmp_eq_u32 vcc, -1, v{vL}")
    if warm:
        e("s_cbranch_vccz L_comb")
        e(f"s_cmp_lg_u32 s{sDry}, 0")
        e("s_cbranch_scc0 L_poll2")
        e.label("L_comb")
    else:
        e("s_cbranch_vccnz L_poll2")
    if phst:
        e("s_memrealtime s[90:91]")
    ror = lambda n: f"row_ror:{n} row_mask:0xf bank_mask:0xf"
    steps = [8, 4, 2, 1] if NG == 16 else [4, 2, 1]
    e(f"v_mov_b32 v{vM}, v{vS}")
    e("s_nop 1")
    for n in steps:
        e(f"v_max_f32_dpp v{vM}, v{vM}, v{vM} {ror(n)}")
        e("s_nop 1")
    e(f"v_mul_f32 v{vMc}, s{sC}, v{vM}")
    e(f"v_fma_f32 v{vP}, v{vS}, s{sC}, -v{vMc}")
    e(f"v_exp_f32 v{vP}, v{vP}")
    e("s_nop 0")
    e(f"v_mul_f32 v{vL}, v{vP}, v{vS+1}")
    e("s_nop 1")
    for n in steps:
        e(f"v_add_f32_dpp v{vL}, v{vL}, v{vL} {ror(n)}")
        e("s_nop 1")
    e(f"v_rcp_f32 v{vL}, v{vL}")
    e("s_nop 0")
    e(f"v_mul_f32 v{vP}, v{vP}, v{vL}")
    e("s_nop 0")
    for p in range(NG):
        e(f"v_readlane_b32 s{68+p}, v{vP}, {p}")
    e("s_nop 1")
    for r in range(4):
        e(f"v_mul_f32 v{vAcc0+r+12}, s68, v{vX+r}")
    for p in range(1, NG):
        for r in range(4):
            e(f"v_fma_f32 v{vAcc0+r+12}, s{68+p}, v{vX+4*p+r}, v{vAcc0+r+12}")
    e(f"v_cvt_pk_bf16_f32 v{vS}, v{vAcc0+12}, v{vAcc0+13}")
    e(f"v_cvt_pk_bf16_f32 v{vS+1}, v{vAcc0+14}, v{vAcc0+15}")
    e(f"s_add_u32 s{sTmp}, s{sH0}, s{sN}")
    e(f"s_mul_i32 s{sTmp}, s{sTmp}, 384")
    e(f"v_lshlrev_b32 v{vT1}, 3, v{vLane}")
    e(f"v_add_u32 v{vT1}, s{sTmp}, v{vT1}")
    if warm:
        e(f"s_cmp_lg_u32 s{sDry}, 0")
        e("s_cbranch_scc1 L_sdone")
    e("s_mov_b32 exec_hi, 0xffff")
    e(f"global_store_dwordx2 v{vT1}, v[{vS}:{vS+1}], s[10:11]")
    e("s_mov_b64 exec, -1")
    e.label("L_sdone")
    if phst:
        e("s_memrealtime s[92:93]")
        e("s_waitcnt vmcnt(0) lgkmcnt(0)")
        e("s_memrealtime s[94:95]")
        e("s_waitcnt lgkmcnt(0)")
        e(f"s_mul_i32 s35, s2, {nw}")
        e(f"s_add_u32 s35, s35, s{sWave}")
        e("s_lshl_b32 s35, s35, 6")
        e("s_add_u32 s35, s35, 0x90000")
        for i in range(6):
            e(f"v_mov_b32 v{100+i}, s{84+2*i}")
        e(f"v_mov_b32 v99, s35")
        e("s_mov_b64 exec, 1")
        e("global_store_dwordx4 v99, v[100:103], s[14:15]")
        e("global_store_dwordx2 v99, v[104:105], s[14:15] offset:16")
        e("s_mov_b64 exec, -1")
    if warm:
        e(f"s_cmp_eq_u32 s{sDry}, 0")
        e("s_cbranch_scc1 L_sexit")
        e(f"s_mov_b32 s{sN}, 0")
        e("s_branch L_sphase")
        e.label("L_sexit")
    if dbgstamp:
        e("s_waitcnt vmcnt(0)")
        e("s_memrealtime s[44:45]")
        e("s_waitcnt lgkmcnt(0)")
        e("s_mov_b64 exec, 1")
        e("s_not_b32 s40, s40")
        e("v_mov_b32 v20, s40")
        e("v_mov_b32 v21, s44")
        e("v_mov_b32 v22, 16")
        e("global_atomic_umax v22, v20, s[12:13]")
        e("global_atomic_umax v22, v21, s[12:13] offset:4")
    if stamp:
        e("s_waitcnt vmcnt(0)")
        e("s_memrealtime s[42:43]")
        e.label("L_stamp")
        e("s_mov_b64 exec, -1")
        e("s_memrealtime s[44:45]")
        e("s_getreg_b32 s46, hwreg(HW_REG_XCC_ID)")
        e("s_getreg_b32 s47, hwreg(HW_REG_HW_ID)")
        e("s_waitcnt lgkmcnt(0)")
        e(f"s_mul_i32 s35, s2, {nw}")
        e(f"s_add_u32 s35, s35, s{sWave}")
        e("s_lshl_b32 s35, s35, 5")
        e("v_mov_b32 v20, s40")
        e("v_mov_b32 v21, s41")
        e("v_mov_b32 v22, s44")
        e("v_mov_b32 v23, s45")
        e("v_mov_b32 v24, s46")
        e("v_mov_b32 v25, s42")
        e("v_mov_b32 v26, s35")
        e("v_mov_b32 v28, s47")
        e("s_mov_b64 exec, 1")
        e("global_store_dwordx4 v26, v[20:23], s[14:15]")
        e("global_store_dwordx2 v26, v[24:25], s[14:15] offset:16")
        e("global_store_dword v26, v28, s[14:15] offset:24")
    e("s_endpgm")
    for tag, d in dyn_blocks:
        e.label(f"L_dyn_{tag}")
        e("s_waitcnt lgkmcnt(0)")
        e(f"s_cmpk_lt_u32 s{sRaw}, {POOL}")
        e(f"s_cselect_b32 s{sVal+d}, 1, 0")
        e(f"s_cselect_b32 s{sK+2}, s{sTens}, 0")
        e(f"s_cselect_b32 s{sV+2}, s{sTens}, 0")
        e(f"s_mul_i32 s{sOff}, s{sRaw}, {TILE}")
        e(f"s_add_u32 s{sOff}, s{sOff}, s{sPoolB}")
        e(f"s_branch L_issue_{tag}")
        e.label(f"L_claim_{tag}")
        e(f"s_cmp_eq_u32 s{sVal+d}, 0")
        e(f"s_cbranch_scc1 L_claimed_{tag}")
        e(f"s_mov_b32 s{sRaw}, 1")
        e(f"s_atomic_add s{sRaw}, s[{sCtr}:{sCtr+1}], 0 glc")
        e(f"s_branch L_claimed_{tag}")
    for tag in rare_blocks:
        e.label(f"L_rare_{tag}")
        e(f"v_mov_b32 v{vT1}, v{vT0}")
        e("s_nop 1")
        e(f"v_permlane32_swap_b32 v{vT0}, v{vT1}")
        e(f"v_max_f32 v{vT0}, v{vT0}, v{vT1}")
        e(f"v_mov_b32 v{vT1}, v{vT0}")
        e("s_nop 1")
        e(f"v_permlane16_swap_b32 v{vT0}, v{vT1}")
        e(f"v_max_f32 v{vT0}, v{vT0}, v{vT1}")
        e(f"v_max_f32 v{vM}, v{vM}, v{vT0}")
        e(f"v_mul_f32 v{vT1}, s{sC}, v{vM}")
        e(f"v_sub_f32 v{vT0}, v{vMc}, v{vT1}")
        e(f"v_exp_f32 v{vT0}, v{vT0}")
        e(f"v_mov_b32 v{vMc}, v{vT1}")
        for r in range(8):
            e(f"v_mul_f32 v{vAcc0+r}, v{vT0}, v{vAcc0+r}")
        e(f"v_mul_f32 v{vL}, v{vT0}, v{vL}")
        e(f"s_branch L_back_{tag}")
    e.label("L_end")
    e("s_endpgm")
    e.o = [x for x in e.o if x is not None]
    e.o.append('.section .rodata,"a"')
    e.o.append(".p2align 6")
    e.o.append(f".amdhsa_kernel {KNAME}")
    e.o.append(f"  .amdhsa_next_free_vgpr {nvgpr}")
    e.o.append("  .amdhsa_next_free_sgpr 100")
    e.o.append(f"  .amdhsa_accum_offset {(nvgpr+3)//4*4}")
    e.o.append("  .amdhsa_group_segment_fixed_size 0")
    e.o.append("  .amdhsa_kernarg_size 48")
    e.o.append("  .amdhsa_user_sgpr_count 2")
    e.o.append("  .amdhsa_user_sgpr_kernarg_segment_ptr 1")
    e.o.append("  .amdhsa_system_sgpr_workgroup_id_x 1")
    e.o.append(".end_amdhsa_kernel")
    return HEADER + e.text()

if __name__ == "__main__":
    import argparse
    ap = argparse.ArgumentParser()
    ap.add_argument("-o", default="/dev/stdout")
    ap.add_argument("--depth", type=int, default=1)
    ap.add_argument("--ng", type=int, default=8)
    ap.add_argument("--ns", type=int, default=2)
    ap.add_argument("--pol", default="nt")
    ap.add_argument("--stamp", action="store_true")
    ap.add_argument("--dbgstamp", action="store_true")
    ap.add_argument("--nocodepf", action="store_true")
    ap.add_argument("--bound", action="store_true")
    ap.add_argument("--prof", action="store_true")
    ap.add_argument("--nobal", action="store_true")
    ap.add_argument("--phst", action="store_true")
    ap.add_argument("--sc", default="sc1")
    ap.add_argument("--clrmode", type=int, default=0)
    ap.add_argument("--kpool", type=int, default=0)
    ap.add_argument("--early", action="store_true")
    ap.add_argument("--nocomp", type=int, default=0)
    ap.add_argument("--nopub", type=int, default=0)
    ap.add_argument("--warm", action="store_true")
    a = ap.parse_args()
    open(a.o, "w").write(gen(NG=a.ng, NS=a.ns, depth=a.depth, pol=a.pol, stamp=a.stamp, dbgstamp=a.dbgstamp, codepf=not a.nocodepf, bound=a.bound, prof=a.prof, bal=not a.nobal, phst=a.phst, sc=a.sc, clrmode=a.clrmode, kpool=a.kpool, early=a.early, nocomp=a.nocomp, nopub=a.nopub, warm=a.warm))
```

```python
import sys, math, struct

KNAME = "standalone__softmax_full_bidir__decode_kernel"
HEADER = """; Kernarg layout for this problem (48 bytes, ptrs only, base s[0:1]):
"""
TENSOR_BYTES = 128 * 4096 * 384
HEAD_BYTES = 4096 * 384
TILE = 6144
NT = 256
CSCALE = (192 ** -0.5) * math.log2(math.e)
SLOT0 = 2 << 20
SLOTSZ = 1024
LSTRIDE = 1088

def f2u(x):
    return struct.unpack("<I", struct.pack("<f", x))[0]

class E:
    def __init__(self):
        self.o = []
    def __call__(self, s):
        self.o.append("  " + s)
    def label(self, s):
        self.o.append(s + ":")
    def c(self, s):
        self.o.append("  ; " + s)
    def text(self):
        return "\n".join(self.o) + "\n"

def gen(NG=8, NS=2, depth=1, pol="nt", stamp=False, dbgstamp=False, codepf=True, warm=False, bound=False, prof=False, bal=True, pollsleep=4, phst=False, sc='sc1', clrmode=0, kpool=0, early=False, nocomp=0, nopub=0, nctr=1, fastpoll=False, st0=False, nobar=True):
    nwg = 256
    P = NG // 2
    G = NG * NS
    assert NT % G == 0
    TPP = NT // G
    NTOT = TPP * P
    assert 0 <= kpool <= TPP - 2
    NSTAT = NTOT - kpool
    POOL = kpool * G
    lgNG = int(math.log2(NG)); assert 1 << lgNG == NG
    lgTPP = int(math.log2(TPP)); assert 1 << lgTPP == TPP
    nw = NS + 1
    FLG0 = LSTRIDE * NS * P
    lds = FLG0 + 256 + 512 if nobar else LSTRIDE * NS * 2 + 256
    e = E()
    vLane = 0
    vKo1, vKo2, vVo1, vVo2 = 1, 2, 3, 4
    vM, vMc, vL = 5, 6, 7
    vT0, vT1, vT2, vT3 = 8, 9, 10, 11
    vMask = 12
    vQ1, vQ2a, vQ2b = 16, 20, 24
    vAcc0, vAcc1 = 28, 32
    vD = 36
    vS = 52
    vP = 56
    vLa0, vLa1 = 62, 63
    vA0, vA1 = 64, 68
    vBuf = 72
    nslot = 2 if early else depth
    if early: assert depth == 1
    vQs = vBuf + 48 * nslot
    nvgpr = vQs + 12 * (P - 1)
    nvgpr = max(nvgpr, 72 + 4*NG + 8, 72 + 12*NS + 8)
    def Kb(d, t): return vBuf + 48*d + 4*t
    def Vb(d, t): return vBuf + 48*d + 24 + 4*t
    def R4(r): return f"v[{r}:{r+3}]"
    sK, sV, sQ = 16, 20, 24
    sOff, sN, sC, sWave = 28, 29, 30, 31
    sLo8 = 32
    sTmp = 34
    sH0, sMb, sLds, sGrp = 36, 37, 38, 39
    sCtr = 52
    sRaw, sPoolB, sFinal = 54, 55, 56
    sVal = 64
    sFlg = 68
    CTR0 = 1 << 20
    sTens = 60
    sT2 = 62
    sSlot = 58
    e.o.append("; @launch grid=(%d,1,1) block=(%d,1,1) lds=%d" % (nwg, nw*64, lds))
    e.o.append('.amdgcn_target "amdgcn-amd-amdhsa--gfx950"')
    e.o.append(".text")
    e.o.append(f".globl {KNAME}")
    e.o.append(".p2align 8")
    e.o.append(f".type {KNAME},@function")
    e.label(KNAME)
    e(f"s_cmp_ge_u32 s2, {nwg}")
    e("s_cbranch_scc1 L_end")
    e("s_load_dwordx8 s[4:11], s[0:1], 0")
    e("s_load_dwordx4 s[12:15], s[0:1], 32")
    if stamp or dbgstamp:
        e("s_memrealtime s[40:41]")
    e(f"v_lshrrev_b32 v{vT0}, 6, v0")
    e(f"v_and_b32 v{vLane}, 63, v0")
    e(f"v_readfirstlane_b32 s{sWave}, v{vT0}")
    e(f"s_lshr_b32 s{sGrp}, s2, {lgNG}")
    e(f"s_and_b32 s{sMb}, s2, {NG-1}")
    e(f"s_mul_i32 s{sH0}, s{sGrp}, {P}")
    e(f"s_mov_b32 s{sC}, {f2u(CSCALE):#x}")
    e(f"s_cmp_eq_u32 s{sWave}, {NS}")
    e("s_cbranch_scc1 L_service")
    e(f"v_and_b32 v{vT0}, 15, v{vLane}")
    e(f"v_lshrrev_b32 v{vT1}, 4, v{vLane}")
    e(f"v_lshrrev_b32 v{vT2}, 2, v{vT0}")
    e(f"v_mul_u32_u24 v{vT2}, 1536, v{vT2}")
    e(f"v_and_b32 v{vT3}, 3, v{vLane}")
    e(f"v_lshl_add_u32 v{vT2}, v{vT3}, 4, v{vT2}")
    e(f"v_lshl_add_u32 v{vKo1}, v{vT1}, 6, v{vT2}")
    e(f"v_lshrrev_b32 v{vKo2}, 1, v{vT1}")
    e(f"v_mul_u32_u24 v{vKo2}, 384, v{vKo2}")
    e(f"v_add_u32 v{vKo2}, v{vKo2}, v{vT2}")
    e(f"v_and_b32 v{vT2}, 1, v{vT1}")
    e(f"v_lshl_add_u32 v{vKo2}, v{vT2}, 6, v{vKo2}")
    e(f"v_add_u32 v{vKo2}, 256, v{vKo2}")
    if bal and NS == 2:
        e(f"s_lshr_b32 s{sOff}, s{sMb}, 2")
        e(f"s_lshl_b32 s{sOff}, s{sOff}, 3")
        e(f"s_and_b32 s{sTmp}, s{sMb}, 3")
        e(f"s_add_u32 s{sOff}, s{sOff}, s{sTmp}")
        e(f"s_lshl2_add_u32 s{sOff}, s{sWave}, s{sOff}")
    elif bal and NS == 4:
        e(f"s_lshr_b32 s{sOff}, s{sMb}, 1")
        e(f"s_lshl_b32 s{sOff}, s{sOff}, 3")
        e(f"s_and_b32 s{sTmp}, s{sMb}, 1")
        e(f"s_lshl_b32 s{sTmp}, s{sTmp}, 1")
        e(f"s_add_u32 s{sOff}, s{sOff}, s{sTmp}")
        e(f"s_and_b32 s{sTmp}, s{sWave}, 1")
        e(f"s_add_u32 s{sOff}, s{sOff}, s{sTmp}")
        e(f"s_lshr_b32 s{sTmp}, s{sWave}, 1")
        e(f"s_lshl2_add_u32 s{sOff}, s{sTmp}, s{sOff}")
    else:
        e(f"s_mul_i32 s{sOff}, s{sMb}, {NS}")
        e(f"s_add_u32 s{sOff}, s{sOff}, s{sWave}")
    e(f"s_lshl_b32 s{sTmp}, s{sH0}, 8")
    e(f"s_add_u32 s{sOff}, s{sOff}, s{sTmp}")
    e(f"s_mul_i32 s{sOff}, s{sOff}, {TILE}")
    e(f"s_mov_b32 s{sTens}, {TENSOR_BYTES}")
    e(f"s_mov_b32 s{sK+2}, s{sTens}")
    e(f"s_mov_b32 s{sK+3}, 0x20000")
    e("s_waitcnt lgkmcnt(0)")
    if st0:
        e("s_memrealtime s[86:87]")
    e(f"s_mov_b32 s{sK}, s6")
    e(f"s_and_b32 s{sK+1}, s7, 0xffff")
    def issueK(d):
        for R in range(4):
            e(f"buffer_load_dwordx4 {R4(Kb(d,R))}, v{vKo1}, s[{sK}:{sK+3}], s{sOff} offen offset:{R*384} {pol}")
        for u in range(2):
            e(f"buffer_load_dwordx4 {R4(Kb(d,4+u))}, v{vKo2}, s[{sK}:{sK+3}], s{sOff} offen offset:{u*768} {pol}")
    def issueV(d):
        for r in range(4):
            e(f"buffer_load_dwordx4 {R4(Vb(d,r))}, v{vVo1}, s[{sV}:{sV+3}], s{sOff} offen offset:{r*384} {pol}")
        for u in range(2):
            e(f"buffer_load_dwordx4 {R4(Vb(d,4+u))}, v{vVo2}, s[{sV}:{sV+3}], s{sOff} offen offset:{u*768} {pol}")
    issueK(0)
    e(f"v_mul_u32_u24 v{vT2}, 1536, v{vT1}")
    e(f"v_lshl_add_u32 v{vVo1}, v{vT0}, 4, v{vT2}")
    e(f"v_lshrrev_b32 v{vVo2}, 3, v{vT0}")
    e(f"v_mul_u32_u24 v{vVo2}, 384, v{vVo2}")
    e(f"v_add_u32 v{vVo2}, v{vVo2}, v{vT2}")
    e(f"v_and_b32 v{vT2}, 7, v{vLane}")
    e(f"v_lshl_add_u32 v{vVo2}, v{vT2}, 4, v{vVo2}")
    e(f"v_add_u32 v{vVo2}, 256, v{vVo2}")
    e(f"s_mov_b32 s{sV}, s8")
    e(f"s_and_b32 s{sV+1}, s9, 0xffff")
    e(f"s_mov_b32 s{sV+2}, s{sTens}")
    e(f"s_mov_b32 s{sV+3}, 0x20000")
    e(f"v_lshlrev_b32 v{vT2}, 4, v{vT3}")
    e(f"v_lshl_add_u32 v{vD}, v{vT1}, 6, v{vT2}")
    e(f"v_and_b32 v{vD+1}, 1, v{vT1}")
    e(f"v_lshl_add_u32 v{vD+1}, v{vD+1}, 6, v{vT2}")
    e(f"v_add_u32 v{vD+1}, 256, v{vD+1}")
    e(f"v_mov_b32 v{vD+2}, 0x40000000")
    e(f"v_cmp_gt_u32 vcc, 32, v{vLane}")
    e(f"s_mul_i32 s{sTmp}, s{sH0}, 384")
    e(f"s_add_u32 s{sQ}, s4, s{sTmp}")
    e(f"v_cndmask_b32 v{vD+3}, v{vD+2}, v{vD+1}, vcc")
    e(f"v_cndmask_b32 v{vD+2}, v{vD+1}, v{vD+2}, vcc")
    e(f"s_addc_u32 s{sQ+1}, s5, 0")
    e(f"s_and_b32 s{sQ+1}, s{sQ+1}, 0xffff")
    e(f"s_mov_b32 s{sQ+2}, {384*P}")
    e(f"s_mov_b32 s{sQ+3}, 0x20000")
    e(f"buffer_load_dwordx4 {R4(vQ1)}, v{vD}, s[{sQ}:{sQ+3}], 0 offen")
    e(f"buffer_load_dwordx4 {R4(vQ2a)}, v{vD+3}, s[{sQ}:{sQ+3}], 0 offen")
    e(f"buffer_load_dwordx4 {R4(vQ2b)}, v{vD+2}, s[{sQ}:{sQ+3}], 0 offen")
    issueV(0)
    for d in range(1, depth):
        e(f"s_add_u32 s{sOff}, s{sOff}, {G*TILE}")
        issueK(d); issueV(d)
    for p in range(1, P):
        b = vQs + 12*(p-1)
        e(f"s_movk_i32 s{sTmp}, {384*p}")
        e(f"buffer_load_dwordx4 {R4(b)}, v{vD}, s[{sQ}:{sQ+3}], s{sTmp} offen")
        e(f"buffer_load_dwordx4 {R4(b+4)}, v{vD+3}, s[{sQ}:{sQ+3}], s{sTmp} offen")
        e(f"buffer_load_dwordx4 {R4(b+8)}, v{vD+2}, s[{sQ}:{sQ+3}], s{sTmp} offen")
    nq = 3 * (P - 1)
    e(f"v_mov_b32 v{vM}, 0xff7fffff")
    e(f"v_mov_b32 v{vMc}, 0xff7fffff")
    e(f"v_mov_b32 v{vL}, 0")
    for r in range(8):
        e(f"v_mov_b32 v{vAcc0+r}, 0")
    e(f"v_and_b32 v{vT2}, 1, v{vLane}")
    e(f"v_lshlrev_b32 v{vT2}, 4, v{vT2}")
    e(f"v_mov_b32 v{vT3}, 0xffff")
    e(f"v_lshlrev_b32 v{vT2}, v{vT2}, v{vT3}")
    e(f"v_bfe_u32 v{vT3}, v{vLane}, 1, 2")
    for k in range(4):
        e(f"v_cmp_eq_u32 vcc, {k}, v{vT3}")
        e("s_nop 1")
        e(f"v_cndmask_b32 v{vMask+k}, 0, v{vT2}, vcc")
    e(f"v_cmp_gt_u32 s[{sLo8}:{sLo8+1}], 8, v{vT0}")
    e(f"s_mul_i32 s{sLds}, s{sWave}, {LSTRIDE}")
    e(f"s_lshl_b32 s{sFlg}, s{sWave}, 2")
    e(f"s_add_u32 s{sFlg}, s{sFlg}, {FLG0}")
    e(f"v_lshlrev_b32 v{vLa0}, 5, v{vT0}")
    e(f"v_lshl_add_u32 v{vLa0}, v{vT1}, 4, v{vLa0}")
    e(f"v_add_u32 v{vLa0}, s{sLds}, v{vLa0}")
    e(f"v_lshrrev_b32 v{vLa1}, 3, v{vT0}")
    e(f"v_lshlrev_b32 v{vLa1}, 8, v{vLa1}")
    e(f"v_and_b32 v{vT2}, 7, v{vT0}")
    e(f"v_lshl_add_u32 v{vLa1}, v{vT2}, 5, v{vLa1}")
    e(f"v_and_b32 v{vT2}, 1, v{vT1}")
    e(f"v_lshl_add_u32 v{vLa1}, v{vT2}, 4, v{vLa1}")
    e(f"v_add_u32 v{vLa1}, s{sLds}, v{vLa1}")
    e(f"v_add_u32 v{vLa1}, 512, v{vLa1}")
    e(f"s_mov_b32 s{sN}, 0")
    if kpool:
        e(f"s_mul_i32 s{sTmp}, s{sGrp}, {nctr}")
        if nctr > 1:
            e(f"s_and_b32 s{sT2}, s{sWave}, {nctr-1}")
            e(f"s_add_u32 s{sTmp}, s{sTmp}, s{sT2}")
        e(f"s_lshl_b32 s{sTmp}, s{sTmp}, 8")
        e(f"s_add_u32 s{sTmp}, s{sTmp}, {CTR0}")
        e(f"s_add_u32 s{sCtr}, s14, s{sTmp}")
        e(f"s_addc_u32 s{sCtr+1}, s15, 0")
        e(f"s_add_u32 s{sPoolB}, s{sH0}, {P-1}")
        e(f"s_mul_i32 s{sPoolB}, s{sPoolB}, {HEAD_BYTES}")
        e(f"s_add_u32 s{sPoolB}, s{sPoolB}, {(TPP-kpool)*G*TILE}")
        if nctr > 1:
            e(f"s_mul_i32 s{sT2}, s{sT2}, {TILE}")
            e(f"s_add_u32 s{sPoolB}, s{sPoolB}, s{sT2}")
        e(f"s_mov_b32 s{sFinal}, 0")
        for d in range(nslot):
            e(f"s_mov_b32 s{sVal+d}, 1")
    wfull = 6 * (2*depth - 1)
    if nobar:
        e("s_barrier")
    if st0:
        e("s_memrealtime s[88:89]")
    e(f"s_waitcnt vmcnt({6 + 12*(depth-1) + nq})")
    if st0:
        e("s_memrealtime s[90:91]")
        e("s_waitcnt lgkmcnt(0)")
        e(f"s_mul_i32 s35, s2, {nw}")
        e(f"s_add_u32 s35, s35, s{sWave}")
        e("s_lshl_b32 s35, s35, 6")
        e("s_add_u32 s35, s35, 0xa0000")
        e("v_mov_b32 v64, s40")
        e("v_mov_b32 v65, s86")
        e("v_mov_b32 v66, s88")
        e("v_mov_b32 v67, s90")
        e("v_mov_b32 v68, s35")
        e("s_mov_b64 exec, 1")
        e("global_store_dwordx4 v68, v[64:67], s[14:15]")
        e("s_mov_b64 exec, -1")
    if prof:
        for r in (72, 73, 78, 79): e(f"s_mov_b32 s{r}, 0")
        e("s_memtime s[80:81]")
        e("s_waitcnt lgkmcnt(0)")
    rare_blocks = []
    dyn_blocks = []
    first = [True]
    e.label("L_loop")
    for d in range(nslot):
        tag = f"m{d}"
        nd = (d + 1) % nslot if early else d
        def t0():
            if prof:
                e("s_memtime s[74:75]")
                e("s_waitcnt lgkmcnt(0)")
        def t1(acc):
            if prof:
                e("s_memtime s[76:77]")
                e("s_waitcnt lgkmcnt(0)")
                e("s_sub_u32 s76, s76, s74")
                e(f"s_add_u32 s{acc}, s{acc}, s76")
        def prefetchK():
            if kpool:
                e(f"s_cmpk_lt_u32 s{sN}, {NSTAT - depth}")
                e(f"s_cbranch_scc0 L_dyn_{tag}")
                e(f"s_add_u32 s{sOff}, s{sOff}, {G*TILE}")
                e.label(f"L_issue_{tag}")
                issueK(nd)
                e(f"s_cmpk_ge_u32 s{sN}, {NSTAT - depth - 1}")
                e(f"s_cbranch_scc1 L_claim_{tag}")
                e.label(f"L_claimed_{tag}")
                dyn_blocks.append((tag, nd))
            else:
                e(f"s_add_u32 s{sOff}, s{sOff}, {G*TILE}")
                e(f"s_cmpk_lt_u32 s{sN}, {NTOT - depth}")
                e(f"s_cselect_b32 s{sK+2}, s{sTens}, 0")
                e(f"s_cselect_b32 s{sV+2}, s{sTens}, 0")
                t0()
                issueK(nd)
                t1(78)
        if kpool:
            e(f"s_cmp_eq_u32 s{sVal+d}, 0")
            e("s_cbranch_scc1 L_final")
        t0()
        e(f"s_waitcnt vmcnt({wfull})")
        t1(72)
        if early:
            prefetchK()
        D = [vD + 4*R for R in range(4)]
        for R in range(4):
            e(f"v_mfma_f32_16x16x32_bf16 {R4(D[R])}, {R4(Kb(d,R))}, {R4(vQ1)}, 0")
        for R in range(4):
            q2 = vQ2a if (R & 1) == 0 else vQ2b
            e(f"v_mfma_f32_16x16x32_bf16 {R4(D[R])}, {R4(Kb(d,4+(R>>1)))}, {R4(q2)}, {R4(D[R])}")
        if early:
            e("s_nop 7")
        else:
            prefetchK()
        for b in range(4):
            for R in range(4):
                qp = f"quad_perm:[{b},{b},{b},{b}] row_mask:0xf bank_mask:0xf"
                if b == 0:
                    e(f"v_mov_b32_dpp v{vS+R}, v{D[R]} {qp}")
                else:
                    e(f"v_add_f32_dpp v{vS+R}, v{D[R]+b}, v{vS+R} {qp}")
        e(f"v_max3_f32 v{vT0}, v{vS}, v{vS+1}, v{vS+2}")
        e(f"v_max_f32 v{vT0}, v{vT0}, v{vS+3}")
        e(f"v_cmp_gt_f32 vcc, v{vT0}, v{vM}")
        e(f"s_cbranch_vccnz L_rare_{tag}")
        e.label(f"L_back_{tag}")
        rare_blocks.append(tag)
        for r in range(4):
            e(f"v_fma_f32 v{vS+r}, v{vS+r}, s{sC}, -v{vMc}")
        for r in range(4):
            e(f"v_exp_f32 v{vS+r}, v{vS+r}")
        e("s_nop 0")
        for r in range(4):
            e(f"v_cvt_pk_bf16_f32 v{vP+r}, v{vS+r}, v{vS+r}")
        e(f"v_add_f32 v{vT0}, v{vS}, v{vS+1}")
        e(f"v_add_f32 v{vT1}, v{vS+2}, v{vS+3}")
        e(f"v_cndmask_b32 v{vP+4}, v{vP+1}, v{vP}, s[{sLo8}:{sLo8+1}]")
        e(f"v_cndmask_b32 v{vP+5}, v{vP+3}, v{vP+2}, s[{sLo8}:{sLo8+1}]")
        e(f"v_add_f32 v{vT0}, v{vT0}, v{vT1}")
        e(f"v_add_f32 v{vL}, v{vL}, v{vT0}")
        seq = [(0, vAcc0, 0), (1, vAcc0, 1), (2, vAcc0, 2), (3, vAcc0, 3), (4, vAcc1, 4), (5, vAcc1, 5)]
        abuf = [vA0, vA1]
        def mkA(n):
            p, acc, vt = seq[n]
            for k in range(4):
                e(f"v_and_b32 v{abuf[n&1]+k}, v{vP+p}, v{vMask+k}")
        mkA(0)
        if early:
            t0()
            e(f"s_waitcnt vmcnt({wfull})")
            t1(73)
            issueV(nd)
        for n in range(6):
            if n + 1 < 6:
                mkA(n + 1)
            else:
                e("s_nop 1")
            if n == 0 and not early:
                t0()
                e(f"s_waitcnt vmcnt({wfull})")
                t1(73)
            p, acc, vt = seq[n]
            e(f"v_mfma_f32_16x16x32_bf16 {R4(acc)}, {R4(abuf[n&1])}, {R4(Vb(d,vt))}, {R4(acc)}")
        if not early:
            t0()
            issueV(d)
            t1(79)
        e(f"s_add_u32 s{sN}, s{sN}, 1")
        if d == nslot - 1:
            e(f"s_and_b32 s{sTmp}, s{sN}, {TPP-1}")
            e("s_cbranch_scc1 L_loop")
            if kpool:
                e(f"s_cmpk_gt_u32 s{sN}, {(P-1)*TPP}")
                e("s_cbranch_scc1 L_loop")
                e("s_branch L_phase")
                e.label("L_final")
                e(f"s_mov_b32 s{sFinal}, 1")
    if nocomp:
        i0 = e.o.index("L_loop:")
        body = e.o[i0:]
        keep = []
        for ln in body:
            t = ln.strip()
            if nocomp == 1 and (t.startswith("v_") or t.startswith("s_nop") or "L_rare" in t or "L_back" in t):
                continue
            if nocomp == 2 and t.startswith("v_mfma"):
                continue
            if nocomp == 3 and (t.startswith("v_") and not t.startswith("v_mfma") or "L_rare" in t or "L_back" in t):
                continue
            keep.append(ln)
        e.o = e.o[:i0] + keep
        if nocomp in (1, 3): rare_blocks.clear()
    assert TPP % nslot == 0
    e.label("L_phase")
    if stamp or dbgstamp:
        e("s_memrealtime s[42:43]")
    if phst:
        e("s_waitcnt lgkmcnt(0)")
        e(f"s_mul_i32 s35, s2, {nw}")
        e(f"s_add_u32 s35, s35, s{sWave}")
        e("s_lshl_b32 s35, s35, 6")
        e(f"s_lshr_b32 s{sTmp}, s{sN}, {lgTPP}")
        if kpool:
            e(f"s_cmp_lg_u32 s{sFinal}, 0")
            e(f"s_cselect_b32 s{sTmp}, {P}, s{sTmp}")
        e(f"s_lshl2_add_u32 s35, s{sTmp}, s35")
        e("s_add_u32 s35, s35, 0x90000")
        e("s_mov_b32 s84, s42")
        e(f"v_mov_b32 v{vT0}, s35")
        e(f"v_mov_b32 v{vT1}, s84")
        e("s_mov_b64 exec, 1")
        e(f"global_store_dword v{vT0}, v{vT1}, s[14:15]")
        e("s_mov_b64 exec, -1")
    e(f"v_mov_b32 v{vT0}, v{vL}")
    e("s_nop 1")
    e(f"v_permlane32_swap_b32 v{vL}, v{vT0}")
    e(f"v_add_f32 v{vL}, v{vL}, v{vT0}")
    e(f"v_mov_b32 v{vT0}, v{vL}")
    e("s_nop 1")
    e(f"v_permlane16_swap_b32 v{vL}, v{vT0}")
    e(f"v_add_f32 v{vS+1}, v{vL}, v{vT0}")
    e(f"v_mov_b32 v{vS}, v{vM}")
    e(f"v_mov_b32 v{vT0}, s{sLds}")
    e("s_mov_b32 exec_hi, 0")
    e(f"ds_write_b128 v{vLa0}, {R4(vAcc0)}")
    e("s_mov_b32 exec_lo, 0x00ff00ff")
    e("s_mov_b32 exec_hi, 0xff00ff00")
    e(f"ds_write_b128 v{vLa1}, {R4(vAcc1)}")
    e("s_mov_b64 exec, 1")
    e(f"ds_write_b64 v{vT0}, v[{vS}:{vS+1}] offset:1024")
    if nobar:
        e(f"v_mov_b32 v{vT1}, s{sFlg}")
        e(f"v_mov_b32 v{vT2}, 1")
        e(f"ds_write_b32 v{vT1}, v{vT2}")
        e("s_mov_b64 exec, -1")
    else:
        e("s_mov_b64 exec, -1")
        e("s_waitcnt lgkmcnt(0)")
        e("s_barrier")
    if kpool:
        e(f"s_cmp_lg_u32 s{sFinal}, 0")
    else:
        e(f"s_cmpk_ge_u32 s{sN}, {NTOT}")
    e("s_cbranch_scc1 L_sfin")
    e(f"v_mov_b32 v{vM}, 0xff7fffff")
    e(f"v_mov_b32 v{vMc}, 0xff7fffff")
    e(f"v_mov_b32 v{vL}, 0")
    if nobar:
        e("s_nop 0")
    for r in range(8):
        e(f"v_mov_b32 v{vAcc0+r}, 0")
    if nobar:
        e(f"s_add_u32 s{sLds}, s{sLds}, {NS*LSTRIDE}")
        e(f"s_add_u32 s{sFlg}, s{sFlg}, {NS*4}")
        e(f"v_add_u32 v{vLa0}, {NS*LSTRIDE}, v{vLa0}")
        e(f"v_add_u32 v{vLa1}, {NS*LSTRIDE}, v{vLa1}")
        if kpool:
            e(f"s_cmpk_lg_u32 s{sN}, {(P-1)*TPP}")
            e("s_cbranch_scc1 L_nordy")
            e(f"v_mov_b32 v{vT1}, {FLG0 + 128}")
            if bound: e("s_mov_b32 s50, 1000000")
            e.label("L_srdy")
            if bound:
                e("s_sub_u32 s50, s50, 1")
                e("s_cbranch_scc1 L_nordy")
            e(f"ds_read_b32 v{vT2}, v{vT1}")
            e("s_waitcnt lgkmcnt(0)")
            e(f"v_cmp_eq_u32 vcc, 0, v{vT2}")
            e("s_cbranch_vccz L_nordy")
            e("s_sleep 4")
            e("s_branch L_srdy")
            e.label("L_nordy")
    else:
        e(f"s_lshr_b32 s{sTmp}, s{sN}, {lgTPP}")
        e(f"s_mov_b32 s{sT2}, {(-NS*LSTRIDE) & 0xffffffff}")
        e(f"s_bitcmp1_b32 s{sTmp}, 0")
        e(f"s_cselect_b32 s{sT2}, {NS*LSTRIDE}, s{sT2}")
        e(f"s_add_u32 s{sLds}, s{sLds}, s{sT2}")
        e(f"v_add_u32 v{vLa0}, s{sT2}, v{vLa0}")
        e(f"v_add_u32 v{vLa1}, s{sT2}, v{vLa1}")
    for r in range(12):
        e(f"v_mov_b32 v{vQ1+r}, v{vQs+r}")
    for p in range(1, P-1):
        for r in range(12):
            e(f"v_mov_b32 v{vQs+12*(p-1)+r}, v{vQs+12*p+r}")
    e("s_branch L_loop")
    e.label("L_sfin")
    if prof:
        e("s_memtime s[82:83]")
        e("s_waitcnt lgkmcnt(0)")
        e("s_sub_u32 s82, s82, s80")
        e("s_mov_b64 exec, 1")
        e(f"s_mul_i32 s35, s2, {nw}")
        e(f"s_add_u32 s35, s35, s{sWave}")
        e("s_lshl_b32 s35, s35, 5")
        e("s_add_u32 s35, s35, 0x80000")
        e("v_mov_b32 v20, s72")
        e("v_mov_b32 v21, s73")
        e("v_mov_b32 v22, s78")
        e("v_mov_b32 v23, s79")
        e("v_mov_b32 v24, s82")
        e("v_mov_b32 v26, s35")
        e("global_store_dwordx4 v26, v[20:23], s[14:15]")
        e("global_store_dword v26, v24, s[14:15] offset:16")
        e("s_mov_b64 exec, -1")
    if stamp:
        e("s_waitcnt vmcnt(0)")
        e("s_branch L_stamp")
    e("s_endpgm")
    e.label("L_service")
    if nobar:
        e(f"v_lshlrev_b32 v{vT1}, 2, v{vLane}")
        e(f"v_mov_b32 v{vT2}, 0")
        e(f"ds_write_b32 v{vT1}, v{vT2} offset:{FLG0}")
        e("s_waitcnt lgkmcnt(0)")
        e("s_barrier")
    if codepf:
        e("s_getpc_b64 s[48:49]")
        e.label("L_pc")
        e(f"s_sub_u32 s48, s48, L_pc-{KNAME}")
        e("s_subb_u32 s49, s49, 0")
        e(f"v_lshlrev_b32 v{vT1}, 7, v{vLane}")
        e(f"v_min_u32 v{vT1}, L_end-{KNAME}, v{vT1}")
        e(f"global_load_dword v{vS}, v{vT1}, s[48:49]")
    e("s_waitcnt lgkmcnt(0)")
    e(f"s_mul_i32 s{sTmp}, s{sH0}, {NG*SLOTSZ}")
    e(f"s_add_u32 s{sTmp}, s{sTmp}, {SLOT0}")
    e(f"s_add_u32 s{sSlot}, s14, s{sTmp}")
    e(f"s_addc_u32 s{sSlot+1}, s15, 0")
    e(f"v_lshlrev_b32 v{vT0}, 4, v{vLane}")
    e(f"s_bitcmp1_b32 s{sMb}, 0")
    e("s_cbranch_scc1 L_noclear")
    e(f"s_lshr_b32 s{sTmp}, s{sMb}, 1")
    e(f"s_mul_i32 s{sT2}, s{sTmp}, {NG*SLOTSZ}")
    e(f"s_add_u32 s{sT2}, s{sSlot}, s{sT2}")
    e(f"s_addc_u32 s{sT2+1}, s{sSlot+1}, 0")
    for r in range(4):
        e(f"v_mov_b32 v{vX0+r}, -1" if False else f"v_mov_b32 v{16+r}, -1")
    e(f"v_mov_b32 v{vT1}, v{vT0}")
    if clrmode == 2:
        for _ in range(4): e("s_sleep 127")
    for p in range(NG):
        if clrmode == 1: continue
        if clrmode == 3:
            e(f"global_store_dwordx4 v{vT1}, v[16:19], s[{sT2}:{sT2+1}]")
            if p + 1 < NG: e(f"v_add_u32 v{vT1}, {SLOTSZ}, v{vT1}")
            continue
        if clrmode == 4 and p > 0: continue
        if clrmode == 5:
            if p == 0: e(f"global_load_dwordx4 v[20:23], v{vT1}, s[{sT2}:{sT2+1}] {sc}")
            continue
        if clrmode == 6:
            if p == 0:
                e(f"v_mov_b32 v20, 240")
                e(f"global_store_dword v20, v16, s[12:13] {sc}")
            continue
        if clrmode == 7:
            if p == 0:
                for _ in range(1): e("s_sleep 100")
                e(f"global_store_dwordx4 v{vT1}, v[16:19], s[{sT2}:{sT2+1}] {sc}")
            continue
        e(f"global_store_dwordx4 v{vT1}, v[16:19], s[{sT2}:{sT2+1}] {sc}")
        if p + 1 < NG:
            e(f"v_add_u32 v{vT1}, {SLOTSZ}, v{vT1}")
    if kpool:
        e(f"s_cmp_lg_u32 s{sMb}, 0")
        e("s_cbranch_scc1 L_noctr")
        e(f"s_mul_i32 s{sT2}, s{sGrp}, {256*nctr}")
        e(f"s_add_u32 s{sT2}, s{sT2}, {CTR0}")
        e(f"v_lshlrev_b32 v{vT1}, 8, v{vLane}")
        e(f"v_add_u32 v{vT1}, s{sT2}, v{vT1}")
        e(f"v_mov_b32 v{vT2}, 0")
        e(f"s_mov_b64 exec, {(1 << nctr) - 1}")
        e(f"global_store_dword v{vT1}, v{vT2}, s[14:15] {sc}")
        e("s_mov_b64 exec, -1")
        e.label("L_noctr")
    e(f"s_add_u32 s{sTmp}, s{sTmp}, s{sH0}")
    e(f"v_mov_b32 v{vT1}, s{sTmp}")
    e(f"v_mov_b32 v{vT2}, 1")
    e("s_waitcnt vmcnt(0)")
    e("s_mov_b64 exec, 1")
    e(f"global_store_byte v{vT1}, v{vT2}, s[12:13] {sc}")
    e("s_mov_b64 exec, -1")
    e.label("L_noclear")
    e("s_waitcnt vmcnt(0)")
    e(f"s_mov_b32 s51, 0")
    e(f"s_mov_b32 s{sN}, 0")
    e(f"s_mov_b32 s{sLds}, 0")
    sDry = 57
    vKeep = 16
    vX = 72
    if warm:
        e(f"s_mov_b32 s{sDry}, 1")
        e("s_branch L_pub")
    e.label("L_sphase")
    if nobar:
        e(f"s_mul_i32 s{sTmp}, s{sN}, {NS*4}")
        e(f"s_add_u32 s{sTmp}, s{sTmp}, {FLG0}")
        e(f"v_and_b32 v{vT1}, {NS-1}, v{vLane}")
        e(f"v_lshl_add_u32 v{vT1}, v{vT1}, 2, s{sTmp}")
        if bound: e("s_mov_b32 s50, 1000000")
        e.label("L_swait")
        if bound:
            e("s_sub_u32 s50, s50, 1")
            e("s_cbranch_scc1 L_sgo")
        e(f"ds_read_b32 v{vT2}, v{vT1}")
        e("s_waitcnt lgkmcnt(0)")
        e(f"v_cmp_eq_u32 vcc, 0, v{vT2}")
        e("s_cbranch_vccz L_sgo")
        e(f"s_cmp_eq_u32 s{sN}, {P-1}")
        e("s_cbranch_scc1 L_swait")
        e("s_sleep 8")
        e("s_branch L_swait")
        e.label("L_sgo")
    else:
        e("s_barrier")
    e(f"v_add_u32 v{vT1}, s{sLds}, v{vT0}")
    e(f"v_mov_b32 v{vT2}, s{sLds}")
    for w in range(NS):
        e(f"ds_read_b128 {R4(vX+12*w)}, v{vT1} offset:{w*LSTRIDE}")
        e(f"ds_read_b128 {R4(vX+12*w+4)}, v{vT1} offset:{w*LSTRIDE+256}")
        e(f"ds_read_b64 v[{vX+12*w+8}:{vX+12*w+9}], v{vT2} offset:{w*LSTRIDE+1024}")
    e(f"v_cmp_le_u32 vcc, 32, v{vLane}")
    if nobar:
        e(f"s_add_u32 s{sLds}, s{sLds}, {NS*LSTRIDE}")
    else:
        e(f"s_xor_b32 s{sLds}, s{sLds}, {NS*LSTRIDE}")
    for i in range(P-1, 0, -1):
        for r in range(4):
            e(f"v_mov_b32 v{vKeep+4*i+r}, v{vKeep+4*(i-1)+r}")
    e("s_waitcnt lgkmcnt(0)")
    e(f"v_mov_b32 v{vM}, v{vX+8}")
    for w in range(1, NS):
        e(f"v_max_f32 v{vM}, v{vM}, v{vX+12*w+8}")
    e(f"v_mul_f32 v{vMc}, s{sC}, v{vM}")
    for w in range(NS):
        b = vX + 12*w
        e(f"v_fma_f32 v{vT2}, v{b+8}, s{sC}, -v{vMc}")
        e(f"v_exp_f32 v{vT2}, v{vT2}")
        for r in range(4):
            e(f"v_cndmask_b32 v{b+4+r}, 0, v{b+4+r}, vcc")
        for r in range(4):
            e(f"v_add_f32 v{b+r}, v{b+r}, v{b+4+r}")
        if w == 0:
            e(f"v_mul_f32 v{vL}, v{vT2}, v{b+9}")
            for r in range(4):
                e(f"v_mul_f32 v{vKeep+r}, v{vT2}, v{b+r}")
        else:
            e(f"v_fma_f32 v{vL}, v{vT2}, v{b+9}, v{vL}")
            for r in range(4):
                e(f"v_fma_f32 v{vKeep+r}, v{vT2}, v{b+r}, v{vKeep+r}")
    e("s_mov_b32 exec_lo, 0")
    e("s_mov_b32 exec_hi, 0x10000")
    e(f"v_mov_b32 v{vKeep}, v{vM}")
    e(f"v_mov_b32 v{vKeep+1}, v{vL}")
    e(f"v_mov_b32 v{vKeep+2}, v{vM}")
    e(f"v_mov_b32 v{vKeep+3}, v{vL}")
    e("s_mov_b64 exec, -1")
    e(f"s_add_u32 s{sN}, s{sN}, 1")
    e(f"s_cmp_ge_u32 s{sN}, {P}")
    e("s_cbranch_scc1 L_pub0")
    e("s_cmp_lg_u32 s51, 0")
    e("s_cbranch_scc1 L_sphase")
    e(f"v_and_b32 v{vT1}, {P-1}, v{vLane}")
    e(f"v_add_u32 v{vT1}, s{sH0}, v{vT1}")
    if bound: e("s_mov_b32 s50, 20000")
    e.label("L_rdy")
    if bound:
        e("s_sub_u32 s50, s50, 1")
        e("s_cbranch_scc1 L_rdy_set")
    e(f"global_load_ubyte v{vT2}, v{vT1}, s[12:13] {sc}")
    e("s_waitcnt vmcnt(0)")
    e(f"v_cmp_eq_u32 vcc, 0, v{vT2}")
    e("s_cbranch_vccz L_rdy_set")
    e("s_sleep 8")
    e("s_branch L_rdy")
    e.label("L_rdy_set")
    e("s_mov_b32 s51, 1")
    if nobar:
        e(f"v_mov_b32 v{vT1}, {FLG0 + 128}")
        e(f"v_mov_b32 v{vT2}, 1")
        e(f"ds_write_b32 v{vT1}, v{vT2}")
    e("s_branch L_sphase")
    e.label("L_pub0")
    if phst:
        e("s_memrealtime s[84:85]")
    e(f"s_mov_b32 s{sDry}, 0")
    e.label("L_pub")
    e(f"s_lshl_b32 s{sTmp}, s{sMb}, 10")
    e(f"v_add_u32 v{vT1}, s{sTmp}, v{vT0}")
    e(f"s_add_u32 s{sT2}, s{sSlot}, {(P-1)*NG*SLOTSZ}")
    e(f"s_addc_u32 s{sT2+1}, s{sSlot+1}, 0")
    e("s_mov_b32 exec_hi, 0x1ffff")
    for i in range(P):
        if warm:
            e(f"s_cmp_lg_u32 s{sDry}, 0")
            e(f"s_cbranch_scc1 L_pskip{i}")
        if not nopub:
            e(f"global_store_dwordx4 v{vT1}, {R4(vKeep+4*i)}, s[{sT2}:{sT2+1}] {sc}")
        if warm:
            e.label(f"L_pskip{i}")
        if i + 1 < P:
            e(f"s_sub_u32 s{sT2}, s{sT2}, {NG*SLOTSZ}")
            e(f"s_subb_u32 s{sT2+1}, s{sT2+1}, 0")
    e("s_mov_b64 exec, -1")
    if phst:
        e("s_memrealtime s[86:87]")
    e(f"s_bitcmp1_b32 s{sMb}, 0")
    e("s_cbranch_scc1 L_sdone")
    e(f"s_lshr_b32 s{sN}, s{sMb}, 1")
    e(f"s_mul_i32 s{sTmp}, s{sN}, {NG*SLOTSZ}")
    e(f"s_add_u32 s{sTmp+0}, s{sTmp}, 0")
    sSC = 58 + 8
    e(f"s_add_u32 s{sSC}, s{sSlot}, s{sTmp}")
    e(f"s_addc_u32 s{sSC+1}, s{sSlot+1}, 0")
    e(f"v_and_b32 v{vT1}, {NG-1}, v{vLane}")
    e(f"v_lshlrev_b32 v{vT1}, 10, v{vT1}")
    e(f"v_min_u32 v{vT2}, 768, v{vT0}")
    if warm:
        e(f"s_cmp_lg_u32 s{sDry}, 0")
        e("s_cbranch_scc0 L_poll")
        e(f"v_mov_b32 v{vT1}, 0")
        e(f"v_mov_b32 v{vT2}, 0")
    if bound: e("s_mov_b32 s50, 20000")
    e.label("L_poll")
    if bound:
        e("s_sub_u32 s50, s50, 1")
        e("s_cbranch_scc1 L_sdone")
    if not fastpoll:
        e(f"global_load_dwordx2 v[{vS}:{vS+1}], v{vT1}, s[{sSC}:{sSC+1}] offset:768 {sc}")
        e("s_waitcnt vmcnt(0)")
        e(f"v_max_u32 v{vL}, v{vS}, v{vS+1}")
        e(f"v_cmp_eq_u32 vcc, -1, v{vL}")
        e("s_cbranch_vccz L_poll2")
        if warm:
            e(f"s_cmp_lg_u32 s{sDry}, 0")
            e("s_cbranch_scc1 L_poll2")
        e(f"s_sleep {pollsleep}")
        e("s_branch L_poll")
    e.label("L_poll2")
    if phst:
        e("s_memrealtime s[88:89]")
    if bound:
        e("s_sub_u32 s50, s50, 1")
        e("s_cbranch_scc1 L_sdone")
    if fastpoll:
        e(f"global_load_dwordx2 v[{vS}:{vS+1}], v{vT1}, s[{sSC}:{sSC+1}] offset:768 {sc}")
    e(f"s_mov_b64 s[{sT2}:{sT2+1}], s[{sSC}:{sSC+1}]")
    for p in range(NG):
        e(f"global_load_dwordx4 {R4(vX+4*p)}, v{vT2}, s[{sT2}:{sT2+1}] offset:{(p%4)*SLOTSZ} {sc}")
        if p % 4 == 3 and p + 1 < NG:
            e(f"s_add_u32 s{sT2}, s{sT2}, {4*SLOTSZ}")
            e(f"s_addc_u32 s{sT2+1}, s{sT2+1}, 0")
    e("s_waitcnt vmcnt(0)")
    if fastpoll:
        e(f"v_max_u32 v{vL}, v{vS}, v{vS+1}")
    else:
        e(f"v_mov_b32 v{vL}, 0")
    for p in range(NG):
        e(f"v_max3_u32 v{vL}, v{vX+4*p}, v{vX+4*p+1}, v{vL}")
        e(f"v_max3_u32 v{vL}, v{vX+4*p+2}, v{vX+4*p+3}, v{vL}")
    e(f"v_cmp_eq_u32 vcc, -1, v{vL}")
    if warm:
        e("s_cbranch_vccz L_comb")
        e(f"s_cmp_lg_u32 s{sDry}, 0")
        e("s_cbranch_scc0 L_poll2")
        e.label("L_comb")
    else:
        e("s_cbranch_vccnz L_poll2")
    if phst:
        e("s_memrealtime s[90:91]")
    ror = lambda n: f"row_ror:{n} row_mask:0xf bank_mask:0xf"
    steps = [8, 4, 2, 1] if NG == 16 else [4, 2, 1]
    e(f"v_mov_b32 v{vM}, v{vS}")
    e("s_nop 1")
    for n in steps:
        e(f"v_max_f32_dpp v{vM}, v{vM}, v{vM} {ror(n)}")
        e("s_nop 1")
    e(f"v_mul_f32 v{vMc}, s{sC}, v{vM}")
    e(f"v_fma_f32 v{vP}, v{vS}, s{sC}, -v{vMc}")
    e(f"v_exp_f32 v{vP}, v{vP}")
    e("s_nop 0")
    e(f"v_mul_f32 v{vL}, v{vP}, v{vS+1}")
    e("s_nop 1")
    for n in steps:
        e(f"v_add_f32_dpp v{vL}, v{vL}, v{vL} {ror(n)}")
        e("s_nop 1")
    e(f"v_rcp_f32 v{vL}, v{vL}")
    e("s_nop 0")
    e(f"v_mul_f32 v{vP}, v{vP}, v{vL}")
    e("s_nop 0")
    for p in range(NG):
        e(f"v_readlane_b32 s{68+p}, v{vP}, {p}")
    e("s_nop 1")
    for r in range(4):
        e(f"v_mul_f32 v{vAcc0+r+12}, s68, v{vX+r}")
    for p in range(1, NG):
        for r in range(4):
            e(f"v_fma_f32 v{vAcc0+r+12}, s{68+p}, v{vX+4*p+r}, v{vAcc0+r+12}")
    e(f"v_cvt_pk_bf16_f32 v{vS}, v{vAcc0+12}, v{vAcc0+13}")
    e(f"v_cvt_pk_bf16_f32 v{vS+1}, v{vAcc0+14}, v{vAcc0+15}")
    e(f"s_add_u32 s{sTmp}, s{sH0}, s{sN}")
    e(f"s_mul_i32 s{sTmp}, s{sTmp}, 384")
    e(f"v_lshlrev_b32 v{vT1}, 3, v{vLane}")
    e(f"v_add_u32 v{vT1}, s{sTmp}, v{vT1}")
    if warm:
        e(f"s_cmp_lg_u32 s{sDry}, 0")
        e("s_cbranch_scc1 L_sdone")
    e("s_mov_b32 exec_hi, 0xffff")
    e(f"global_store_dwordx2 v{vT1}, v[{vS}:{vS+1}], s[10:11]")
    e("s_mov_b64 exec, -1")
    e.label("L_sdone")
    if phst:
        e("s_memrealtime s[92:93]")
        e("s_waitcnt vmcnt(0) lgkmcnt(0)")
        e("s_memrealtime s[94:95]")
        e("s_waitcnt lgkmcnt(0)")
        e(f"s_mul_i32 s35, s2, {nw}")
        e(f"s_add_u32 s35, s35, s{sWave}")
        e("s_lshl_b32 s35, s35, 6")
        e("s_add_u32 s35, s35, 0x90000")
        for i in range(6):
            e(f"v_mov_b32 v{100+i}, s{84+2*i}")
        e(f"v_mov_b32 v99, s35")
        e("s_mov_b64 exec, 1")
        e("global_store_dwordx4 v99, v[100:103], s[14:15]")
        e("global_store_dwordx2 v99, v[104:105], s[14:15] offset:16")
        e("s_mov_b64 exec, -1")
    if warm:
        e(f"s_cmp_eq_u32 s{sDry}, 0")
        e("s_cbranch_scc1 L_sexit")
        e(f"s_mov_b32 s{sN}, 0")
        e("s_branch L_sphase")
        e.label("L_sexit")
    if dbgstamp:
        e("s_waitcnt vmcnt(0)")
        e("s_memrealtime s[44:45]")
        e("s_waitcnt lgkmcnt(0)")
        e("s_mov_b64 exec, 1")
        e("s_not_b32 s40, s40")
        e("v_mov_b32 v20, s40")
        e("v_mov_b32 v21, s44")
        e("v_mov_b32 v22, 16")
        e("global_atomic_umax v22, v20, s[12:13]")
        e("global_atomic_umax v22, v21, s[12:13] offset:4")
    if stamp:
        e("s_waitcnt vmcnt(0)")
        e("s_memrealtime s[42:43]")
        e.label("L_stamp")
        e("s_mov_b64 exec, -1")
        e("s_memrealtime s[44:45]")
        e("s_getreg_b32 s46, hwreg(HW_REG_XCC_ID)")
        e("s_getreg_b32 s47, hwreg(HW_REG_HW_ID)")
        e("s_waitcnt lgkmcnt(0)")
        e(f"s_mul_i32 s35, s2, {nw}")
        e(f"s_add_u32 s35, s35, s{sWave}")
        e("s_lshl_b32 s35, s35, 5")
        e("v_mov_b32 v20, s40")
        e("v_mov_b32 v21, s41")
        e("v_mov_b32 v22, s44")
        e("v_mov_b32 v23, s45")
        e("v_mov_b32 v24, s46")
        e("v_mov_b32 v25, s42")
        e("v_mov_b32 v26, s35")
        e("v_mov_b32 v28, s47")
        e("s_mov_b64 exec, 1")
        e("global_store_dwordx4 v26, v[20:23], s[14:15]")
        e("global_store_dwordx2 v26, v[24:25], s[14:15] offset:16")
        e("global_store_dword v26, v28, s[14:15] offset:24")
    e("s_endpgm")
    for tag, d in dyn_blocks:
        e.label(f"L_dyn_{tag}")
        e("s_waitcnt lgkmcnt(0)")
        e(f"s_cmpk_lt_u32 s{sRaw}, {POOL // nctr}")
        e(f"s_cselect_b32 s{sVal+d}, 1, 0")
        e(f"s_cselect_b32 s{sK+2}, s{sTens}, 0")
        e(f"s_cselect_b32 s{sV+2}, s{sTens}, 0")
        e(f"s_mul_i32 s{sOff}, s{sRaw}, {TILE * nctr}")
        e(f"s_add_u32 s{sOff}, s{sOff}, s{sPoolB}")
        e(f"s_branch L_issue_{tag}")
        e.label(f"L_claim_{tag}")
        e(f"s_cmp_eq_u32 s{sVal+d}, 0")
        e(f"s_cbranch_scc1 L_claimed_{tag}")
        e(f"s_mov_b32 s{sRaw}, 1")
        e(f"s_atomic_add s{sRaw}, s[{sCtr}:{sCtr+1}], 0 glc")
        e(f"s_branch L_claimed_{tag}")
    for tag in rare_blocks:
        e.label(f"L_rare_{tag}")
        e(f"v_mov_b32 v{vT1}, v{vT0}")
        e("s_nop 1")
        e(f"v_permlane32_swap_b32 v{vT0}, v{vT1}")
        e(f"v_max_f32 v{vT0}, v{vT0}, v{vT1}")
        e(f"v_mov_b32 v{vT1}, v{vT0}")
        e("s_nop 1")
        e(f"v_permlane16_swap_b32 v{vT0}, v{vT1}")
        e(f"v_max_f32 v{vT0}, v{vT0}, v{vT1}")
        e(f"v_max_f32 v{vM}, v{vM}, v{vT0}")
        e(f"v_mul_f32 v{vT1}, s{sC}, v{vM}")
        e(f"v_sub_f32 v{vT0}, v{vMc}, v{vT1}")
        e(f"v_exp_f32 v{vT0}, v{vT0}")
        e(f"v_mov_b32 v{vMc}, v{vT1}")
        for r in range(8):
            e(f"v_mul_f32 v{vAcc0+r}, v{vT0}, v{vAcc0+r}")
        e(f"v_mul_f32 v{vL}, v{vT0}, v{vL}")
        e(f"s_branch L_back_{tag}")
    e.label("L_end")
    e("s_endpgm")
    e.o = [x for x in e.o if x is not None]
    e.o.append('.section .rodata,"a"')
    e.o.append(".p2align 6")
    e.o.append(f".amdhsa_kernel {KNAME}")
    e.o.append(f"  .amdhsa_next_free_vgpr {nvgpr}")
    e.o.append("  .amdhsa_next_free_sgpr 100")
    e.o.append(f"  .amdhsa_accum_offset {(nvgpr+3)//4*4}")
    e.o.append("  .amdhsa_group_segment_fixed_size 0")
    e.o.append("  .amdhsa_kernarg_size 48")
    e.o.append("  .amdhsa_user_sgpr_count 2")
    e.o.append("  .amdhsa_user_sgpr_kernarg_segment_ptr 1")
    e.o.append("  .amdhsa_system_sgpr_workgroup_id_x 1")
    e.o.append(".end_amdhsa_kernel")
    return HEADER + e.text()

if __name__ == "__main__":
    import argparse
    ap = argparse.ArgumentParser()
    ap.add_argument("-o", default="/dev/stdout")
    ap.add_argument("--depth", type=int, default=1)
    ap.add_argument("--ng", type=int, default=8)
    ap.add_argument("--ns", type=int, default=2)
    ap.add_argument("--pol", default="nt")
    ap.add_argument("--stamp", action="store_true")
    ap.add_argument("--dbgstamp", action="store_true")
    ap.add_argument("--nocodepf", action="store_true")
    ap.add_argument("--bound", action="store_true")
    ap.add_argument("--prof", action="store_true")
    ap.add_argument("--nobal", action="store_true")
    ap.add_argument("--phst", action="store_true")
    ap.add_argument("--sc", default="sc1")
    ap.add_argument("--clrmode", type=int, default=0)
    ap.add_argument("--kpool", type=int, default=0)
    ap.add_argument("--early", action="store_true")
    ap.add_argument("--nocomp", type=int, default=0)
    ap.add_argument("--nopub", type=int, default=0)
    ap.add_argument("--warm", action="store_true")
    ap.add_argument("--nctr", type=int, default=1)
    ap.add_argument("--fastpoll", action="store_true")
    ap.add_argument("--st0", action="store_true")
    ap.add_argument("--bar", action="store_true")
    a = ap.parse_args()
    open(a.o, "w").write(gen(NG=a.ng, NS=a.ns, depth=a.depth, pol=a.pol, stamp=a.stamp, dbgstamp=a.dbgstamp, codepf=not a.nocodepf, bound=a.bound, prof=a.prof, bal=not a.nobal, phst=a.phst, sc=a.sc, clrmode=a.clrmode, kpool=a.kpool, early=a.early, nocomp=a.nocomp, nopub=a.nopub, warm=a.warm, nctr=a.nctr, fastpoll=a.fastpoll, st0=a.st0, nobar=not a.bar))
```

```python
import sys, math, struct

KNAME = "standalone__softmax_full_bidir__decode_kernel"
HEADER = """; Kernarg layout for this problem (48 bytes, ptrs only, base s[0:1]):
"""
TENSOR_BYTES = 128 * 4096 * 384
HEAD_BYTES = 4096 * 384
TILE = 6144
NT = 256
CSCALE = (192 ** -0.5) * math.log2(math.e)
SLOT0 = 2 << 20
SLOTSZ = 1024
LSTRIDE = 1088

def f2u(x):
    return struct.unpack("<I", struct.pack("<f", x))[0]

class E:
    def __init__(self):
        self.o = []
    def __call__(self, s):
        self.o.append("  " + s)
    def label(self, s):
        self.o.append(s + ":")
    def c(self, s):
        self.o.append("  ; " + s)
    def text(self):
        return "\n".join(self.o) + "\n"

def gen(NG=8, NS=2, depth=1, pol="nt", stamp=False, dbgstamp=False, codepf=True, warm=False, bound=False, prof=False, bal=True, pollsleep=4, phst=False, sc='sc1', clrmode=0, kpool=0, early=False, nocomp=0, nopub=0, nctr=1, fastpoll=False, st0=False, nobar=True, hst=False):
    nwg = 256
    P = NG // 2
    G = NG * NS
    assert NT % G == 0
    TPP = NT // G
    NTOT = TPP * P
    assert 0 <= kpool <= TPP - 2
    NSTAT = NTOT - kpool
    POOL = kpool * G
    lgNG = int(math.log2(NG)); assert 1 << lgNG == NG
    lgTPP = int(math.log2(TPP)); assert 1 << lgTPP == TPP
    nw = NS + 1
    FLG0 = LSTRIDE * NS * P
    lds = FLG0 + 256 + 512 if nobar else LSTRIDE * NS * 2 + 256
    e = E()
    vLane = 0
    vKo1, vKo2, vVo1, vVo2 = 1, 2, 3, 4
    vM, vMc, vL = 5, 6, 7
    vT0, vT1, vT2, vT3 = 8, 9, 10, 11
    vMask = 12
    vQ1, vQ2a, vQ2b = 16, 20, 24
    vAcc0, vAcc1 = 28, 32
    vD = 36
    vS = 52
    vP = 56
    vLa0, vLa1 = 62, 63
    vA0, vA1 = 64, 68
    vBuf = 72
    nslot = 2 if early else depth
    if early: assert depth == 1
    vQs = vBuf + 48 * nslot
    nvgpr = vQs + 12 * (P - 1)
    nvgpr = max(nvgpr, 72 + 4*NG + 8, 72 + 12*NS + 8)
    def Kb(d, t): return vBuf + 48*d + 4*t
    def Vb(d, t): return vBuf + 48*d + 24 + 4*t
    def R4(r): return f"v[{r}:{r+3}]"
    sK, sV, sQ = 16, 20, 24
    sOff, sN, sC, sWave = 28, 29, 30, 31
    sLo8 = 32
    sTmp = 34
    sH0, sMb, sLds, sGrp = 36, 37, 38, 39
    sCtr = 52
    sRaw, sPoolB, sFinal = 54, 55, 56
    sVal = 64
    sFlg = 68
    CTR0 = 1 << 20
    sTens = 60
    sT2 = 62
    sSlot = 58
    e.o.append("; @launch grid=(%d,1,1) block=(%d,1,1) lds=%d" % (nwg, nw*64, lds))
    e.o.append('.amdgcn_target "amdgcn-amd-amdhsa--gfx950"')
    e.o.append(".text")
    e.o.append(f".globl {KNAME}")
    e.o.append(".p2align 8")
    e.o.append(f".type {KNAME},@function")
    e.label(KNAME)
    e(f"s_cmp_ge_u32 s2, {nwg}")
    e("s_cbranch_scc1 L_end")
    e("s_load_dwordx8 s[4:11], s[0:1], 0")
    e("s_load_dwordx4 s[12:15], s[0:1], 32")
    if stamp or dbgstamp or hst:
        e("s_memrealtime s[40:41]")
    e(f"v_lshrrev_b32 v{vT0}, 6, v0")
    e(f"v_and_b32 v{vLane}, 63, v0")
    e(f"v_readfirstlane_b32 s{sWave}, v{vT0}")
    e(f"s_lshr_b32 s{sGrp}, s2, {lgNG}")
    e(f"s_and_b32 s{sMb}, s2, {NG-1}")
    e(f"s_mul_i32 s{sH0}, s{sGrp}, {P}")
    e(f"s_mov_b32 s{sC}, {f2u(CSCALE):#x}")
    e(f"s_cmp_eq_u32 s{sWave}, {NS}")
    e("s_cbranch_scc1 L_service")
    e(f"v_and_b32 v{vT0}, 15, v{vLane}")
    e(f"v_lshrrev_b32 v{vT1}, 4, v{vLane}")
    e(f"v_lshrrev_b32 v{vT2}, 2, v{vT0}")
    e(f"v_mul_u32_u24 v{vT2}, 1536, v{vT2}")
    e(f"v_and_b32 v{vT3}, 3, v{vLane}")
    e(f"v_lshl_add_u32 v{vT2}, v{vT3}, 4, v{vT2}")
    e(f"v_lshl_add_u32 v{vKo1}, v{vT1}, 6, v{vT2}")
    e(f"v_lshrrev_b32 v{vKo2}, 1, v{vT1}")
    e(f"v_mul_u32_u24 v{vKo2}, 384, v{vKo2}")
    e(f"v_add_u32 v{vKo2}, v{vKo2}, v{vT2}")
    e(f"v_and_b32 v{vT2}, 1, v{vT1}")
    e(f"v_lshl_add_u32 v{vKo2}, v{vT2}, 6, v{vKo2}")
    e(f"v_add_u32 v{vKo2}, 256, v{vKo2}")
    if bal and NS == 2:
        e(f"s_lshr_b32 s{sOff}, s{sMb}, 2")
        e(f"s_lshl_b32 s{sOff}, s{sOff}, 3")
        e(f"s_and_b32 s{sTmp}, s{sMb}, 3")
        e(f"s_add_u32 s{sOff}, s{sOff}, s{sTmp}")
        e(f"s_lshl2_add_u32 s{sOff}, s{sWave}, s{sOff}")
    elif bal and NS == 4:
        e(f"s_lshr_b32 s{sOff}, s{sMb}, 1")
        e(f"s_lshl_b32 s{sOff}, s{sOff}, 3")
        e(f"s_and_b32 s{sTmp}, s{sMb}, 1")
        e(f"s_lshl_b32 s{sTmp}, s{sTmp}, 1")
        e(f"s_add_u32 s{sOff}, s{sOff}, s{sTmp}")
        e(f"s_and_b32 s{sTmp}, s{sWave}, 1")
        e(f"s_add_u32 s{sOff}, s{sOff}, s{sTmp}")
        e(f"s_lshr_b32 s{sTmp}, s{sWave}, 1")
        e(f"s_lshl2_add_u32 s{sOff}, s{sTmp}, s{sOff}")
    else:
        e(f"s_mul_i32 s{sOff}, s{sMb}, {NS}")
        e(f"s_add_u32 s{sOff}, s{sOff}, s{sWave}")
    e(f"s_lshl_b32 s{sTmp}, s{sH0}, 8")
    e(f"s_add_u32 s{sOff}, s{sOff}, s{sTmp}")
    e(f"s_mul_i32 s{sOff}, s{sOff}, {TILE}")
    e(f"s_mov_b32 s{sTens}, {TENSOR_BYTES}")
    e(f"s_mov_b32 s{sK+2}, s{sTens}")
    e(f"s_mov_b32 s{sK+3}, 0x20000")
    e("s_waitcnt lgkmcnt(0)")
    if st0:
        e("s_memrealtime s[86:87]")
    e(f"s_mov_b32 s{sK}, s6")
    e(f"s_and_b32 s{sK+1}, s7, 0xffff")
    def issueK(d):
        for R in range(4):
            e(f"buffer_load_dwordx4 {R4(Kb(d,R))}, v{vKo1}, s[{sK}:{sK+3}], s{sOff} offen offset:{R*384} {pol}")
        for u in range(2):
            e(f"buffer_load_dwordx4 {R4(Kb(d,4+u))}, v{vKo2}, s[{sK}:{sK+3}], s{sOff} offen offset:{u*768} {pol}")
    def issueV(d):
        for r in range(4):
            e(f"buffer_load_dwordx4 {R4(Vb(d,r))}, v{vVo1}, s[{sV}:{sV+3}], s{sOff} offen offset:{r*384} {pol}")
        for u in range(2):
            e(f"buffer_load_dwordx4 {R4(Vb(d,4+u))}, v{vVo2}, s[{sV}:{sV+3}], s{sOff} offen offset:{u*768} {pol}")
    issueK(0)
    e(f"v_mul_u32_u24 v{vT2}, 1536, v{vT1}")
    e(f"v_lshl_add_u32 v{vVo1}, v{vT0}, 4, v{vT2}")
    e(f"v_lshrrev_b32 v{vVo2}, 3, v{vT0}")
    e(f"v_mul_u32_u24 v{vVo2}, 384, v{vVo2}")
    e(f"v_add_u32 v{vVo2}, v{vVo2}, v{vT2}")
    e(f"v_and_b32 v{vT2}, 7, v{vLane}")
    e(f"v_lshl_add_u32 v{vVo2}, v{vT2}, 4, v{vVo2}")
    e(f"v_add_u32 v{vVo2}, 256, v{vVo2}")
    e(f"s_mov_b32 s{sV}, s8")
    e(f"s_and_b32 s{sV+1}, s9, 0xffff")
    e(f"s_mov_b32 s{sV+2}, s{sTens}")
    e(f"s_mov_b32 s{sV+3}, 0x20000")
    e(f"v_lshlrev_b32 v{vT2}, 4, v{vT3}")
    e(f"v_lshl_add_u32 v{vD}, v{vT1}, 6, v{vT2}")
    e(f"v_and_b32 v{vD+1}, 1, v{vT1}")
    e(f"v_lshl_add_u32 v{vD+1}, v{vD+1}, 6, v{vT2}")
    e(f"v_add_u32 v{vD+1}, 256, v{vD+1}")
    e(f"v_mov_b32 v{vD+2}, 0x40000000")
    e(f"v_cmp_gt_u32 vcc, 32, v{vLane}")
    e(f"s_mul_i32 s{sTmp}, s{sH0}, 384")
    e(f"s_add_u32 s{sQ}, s4, s{sTmp}")
    e(f"v_cndmask_b32 v{vD+3}, v{vD+2}, v{vD+1}, vcc")
    e(f"v_cndmask_b32 v{vD+2}, v{vD+1}, v{vD+2}, vcc")
    e(f"s_addc_u32 s{sQ+1}, s5, 0")
    e(f"s_and_b32 s{sQ+1}, s{sQ+1}, 0xffff")
    e(f"s_mov_b32 s{sQ+2}, {384*P}")
    e(f"s_mov_b32 s{sQ+3}, 0x20000")
    e(f"buffer_load_dwordx4 {R4(vQ1)}, v{vD}, s[{sQ}:{sQ+3}], 0 offen")
    e(f"buffer_load_dwordx4 {R4(vQ2a)}, v{vD+3}, s[{sQ}:{sQ+3}], 0 offen")
    e(f"buffer_load_dwordx4 {R4(vQ2b)}, v{vD+2}, s[{sQ}:{sQ+3}], 0 offen")
    issueV(0)
    for d in range(1, depth):
        e(f"s_add_u32 s{sOff}, s{sOff}, {G*TILE}")
        issueK(d); issueV(d)
    for p in range(1, P):
        b = vQs + 12*(p-1)
        e(f"s_movk_i32 s{sTmp}, {384*p}")
        e(f"buffer_load_dwordx4 {R4(b)}, v{vD}, s[{sQ}:{sQ+3}], s{sTmp} offen")
        e(f"buffer_load_dwordx4 {R4(b+4)}, v{vD+3}, s[{sQ}:{sQ+3}], s{sTmp} offen")
        e(f"buffer_load_dwordx4 {R4(b+8)}, v{vD+2}, s[{sQ}:{sQ+3}], s{sTmp} offen")
    nq = 3 * (P - 1)
    e(f"v_mov_b32 v{vM}, 0xff7fffff")
    e(f"v_mov_b32 v{vMc}, 0xff7fffff")
    e(f"v_mov_b32 v{vL}, 0")
    for r in range(8):
        e(f"v_mov_b32 v{vAcc0+r}, 0")
    e(f"v_and_b32 v{vT2}, 1, v{vLane}")
    e(f"v_lshlrev_b32 v{vT2}, 4, v{vT2}")
    e(f"v_mov_b32 v{vT3}, 0xffff")
    e(f"v_lshlrev_b32 v{vT2}, v{vT2}, v{vT3}")
    e(f"v_bfe_u32 v{vT3}, v{vLane}, 1, 2")
    for k in range(4):
        e(f"v_cmp_eq_u32 vcc, {k}, v{vT3}")
        e("s_nop 1")
        e(f"v_cndmask_b32 v{vMask+k}, 0, v{vT2}, vcc")
    e(f"v_cmp_gt_u32 s[{sLo8}:{sLo8+1}], 8, v{vT0}")
    e(f"s_mul_i32 s{sLds}, s{sWave}, {LSTRIDE}")
    e(f"s_lshl_b32 s{sFlg}, s{sWave}, 2")
    e(f"s_add_u32 s{sFlg}, s{sFlg}, {FLG0}")
    e(f"v_lshlrev_b32 v{vLa0}, 5, v{vT0}")
    e(f"v_lshl_add_u32 v{vLa0}, v{vT1}, 4, v{vLa0}")
    e(f"v_add_u32 v{vLa0}, s{sLds}, v{vLa0}")
    e(f"v_lshrrev_b32 v{vLa1}, 3, v{vT0}")
    e(f"v_lshlrev_b32 v{vLa1}, 8, v{vLa1}")
    e(f"v_and_b32 v{vT2}, 7, v{vT0}")
    e(f"v_lshl_add_u32 v{vLa1}, v{vT2}, 5, v{vLa1}")
    e(f"v_and_b32 v{vT2}, 1, v{vT1}")
    e(f"v_lshl_add_u32 v{vLa1}, v{vT2}, 4, v{vLa1}")
    e(f"v_add_u32 v{vLa1}, s{sLds}, v{vLa1}")
    e(f"v_add_u32 v{vLa1}, 512, v{vLa1}")
    e(f"s_mov_b32 s{sN}, 0")
    if kpool:
        e(f"s_mul_i32 s{sTmp}, s{sGrp}, {nctr}")
        if nctr > 1:
            e(f"s_and_b32 s{sT2}, s{sWave}, {nctr-1}")
            e(f"s_add_u32 s{sTmp}, s{sTmp}, s{sT2}")
        e(f"s_lshl_b32 s{sTmp}, s{sTmp}, 8")
        e(f"s_add_u32 s{sTmp}, s{sTmp}, {CTR0}")
        e(f"s_add_u32 s{sCtr}, s14, s{sTmp}")
        e(f"s_addc_u32 s{sCtr+1}, s15, 0")
        e(f"s_add_u32 s{sPoolB}, s{sH0}, {P-1}")
        e(f"s_mul_i32 s{sPoolB}, s{sPoolB}, {HEAD_BYTES}")
        e(f"s_add_u32 s{sPoolB}, s{sPoolB}, {(TPP-kpool)*G*TILE}")
        if nctr > 1:
            e(f"s_mul_i32 s{sT2}, s{sT2}, {TILE}")
            e(f"s_add_u32 s{sPoolB}, s{sPoolB}, s{sT2}")
        e(f"s_mov_b32 s{sFinal}, 0")
        for d in range(nslot):
            e(f"s_mov_b32 s{sVal+d}, 1")
    wfull = 6 * (2*depth - 1)
    if nobar:
        e("s_barrier")
    if st0:
        e("s_memrealtime s[88:89]")
    e(f"s_waitcnt vmcnt({6 + 12*(depth-1) + nq})")
    if hst:
        e("s_memrealtime s[86:87]")
        e("s_mov_b32 s88, 0")
        e("s_mov_b32 s90, 0")
    if st0:
        e("s_memrealtime s[90:91]")
        e("s_waitcnt lgkmcnt(0)")
        e(f"s_mul_i32 s35, s2, {nw}")
        e(f"s_add_u32 s35, s35, s{sWave}")
        e("s_lshl_b32 s35, s35, 6")
        e("s_add_u32 s35, s35, 0xa0000")
        e("v_mov_b32 v64, s40")
        e("v_mov_b32 v65, s86")
        e("v_mov_b32 v66, s88")
        e("v_mov_b32 v67, s90")
        e("v_mov_b32 v68, s35")
        e("s_mov_b64 exec, 1")
        e("global_store_dwordx4 v68, v[64:67], s[14:15]")
        e("s_mov_b64 exec, -1")
    if prof:
        for r in (72, 73, 78, 79): e(f"s_mov_b32 s{r}, 0")
        e("s_memtime s[80:81]")
        e("s_waitcnt lgkmcnt(0)")
    rare_blocks = []
    dyn_blocks = []
    first = [True]
    e.label("L_loop")
    for d in range(nslot):
        tag = f"m{d}"
        nd = (d + 1) % nslot if early else d
        def t0():
            if prof:
                e("s_memtime s[74:75]")
                e("s_waitcnt lgkmcnt(0)")
        def t1(acc):
            if prof:
                e("s_memtime s[76:77]")
                e("s_waitcnt lgkmcnt(0)")
                e("s_sub_u32 s76, s76, s74")
                e(f"s_add_u32 s{acc}, s{acc}, s76")
        def prefetchK():
            if kpool:
                e(f"s_cmpk_lt_u32 s{sN}, {NSTAT - depth}")
                e(f"s_cbranch_scc0 L_dyn_{tag}")
                e(f"s_add_u32 s{sOff}, s{sOff}, {G*TILE}")
                e.label(f"L_issue_{tag}")
                issueK(nd)
                e(f"s_cmpk_ge_u32 s{sN}, {NSTAT - depth - 1}")
                e(f"s_cbranch_scc1 L_claim_{tag}")
                e.label(f"L_claimed_{tag}")
                dyn_blocks.append((tag, nd))
            else:
                e(f"s_add_u32 s{sOff}, s{sOff}, {G*TILE}")
                e(f"s_cmpk_lt_u32 s{sN}, {NTOT - depth}")
                e(f"s_cselect_b32 s{sK+2}, s{sTens}, 0")
                e(f"s_cselect_b32 s{sV+2}, s{sTens}, 0")
                t0()
                issueK(nd)
                t1(78)
        if kpool:
            e(f"s_cmp_eq_u32 s{sVal+d}, 0")
            e("s_cbranch_scc1 L_final")
        t0()
        e(f"s_waitcnt vmcnt({wfull})")
        t1(72)
        if early:
            prefetchK()
        D = [vD + 4*R for R in range(4)]
        for R in range(4):
            e(f"v_mfma_f32_16x16x32_bf16 {R4(D[R])}, {R4(Kb(d,R))}, {R4(vQ1)}, 0")
        for R in range(4):
            q2 = vQ2a if (R & 1) == 0 else vQ2b
            e(f"v_mfma_f32_16x16x32_bf16 {R4(D[R])}, {R4(Kb(d,4+(R>>1)))}, {R4(q2)}, {R4(D[R])}")
        if early:
            e("s_nop 7")
        else:
            prefetchK()
        for b in range(4):
            for R in range(4):
                qp = f"quad_perm:[{b},{b},{b},{b}] row_mask:0xf bank_mask:0xf"
                if b == 0:
                    e(f"v_mov_b32_dpp v{vS+R}, v{D[R]} {qp}")
                else:
                    e(f"v_add_f32_dpp v{vS+R}, v{D[R]+b}, v{vS+R} {qp}")
        e(f"v_max3_f32 v{vT0}, v{vS}, v{vS+1}, v{vS+2}")
        e(f"v_max_f32 v{vT0}, v{vT0}, v{vS+3}")
        e(f"v_cmp_gt_f32 vcc, v{vT0}, v{vM}")
        e(f"s_cbranch_vccnz L_rare_{tag}")
        e.label(f"L_back_{tag}")
        rare_blocks.append(tag)
        for r in range(4):
            e(f"v_fma_f32 v{vS+r}, v{vS+r}, s{sC}, -v{vMc}")
        for r in range(4):
            e(f"v_exp_f32 v{vS+r}, v{vS+r}")
        e("s_nop 0")
        for r in range(4):
            e(f"v_cvt_pk_bf16_f32 v{vP+r}, v{vS+r}, v{vS+r}")
        e(f"v_add_f32 v{vT0}, v{vS}, v{vS+1}")
        e(f"v_add_f32 v{vT1}, v{vS+2}, v{vS+3}")
        e(f"v_cndmask_b32 v{vP+4}, v{vP+1}, v{vP}, s[{sLo8}:{sLo8+1}]")
        e(f"v_cndmask_b32 v{vP+5}, v{vP+3}, v{vP+2}, s[{sLo8}:{sLo8+1}]")
        e(f"v_add_f32 v{vT0}, v{vT0}, v{vT1}")
        e(f"v_add_f32 v{vL}, v{vL}, v{vT0}")
        seq = [(0, vAcc0, 0), (1, vAcc0, 1), (2, vAcc0, 2), (3, vAcc0, 3), (4, vAcc1, 4), (5, vAcc1, 5)]
        abuf = [vA0, vA1]
        def mkA(n):
            p, acc, vt = seq[n]
            for k in range(4):
                e(f"v_and_b32 v{abuf[n&1]+k}, v{vP+p}, v{vMask+k}")
        mkA(0)
        if early:
            t0()
            e(f"s_waitcnt vmcnt({wfull})")
            t1(73)
            issueV(nd)
        for n in range(6):
            if n + 1 < 6:
                mkA(n + 1)
            else:
                e("s_nop 1")
            if n == 0 and not early:
                t0()
                e(f"s_waitcnt vmcnt({wfull})")
                t1(73)
            p, acc, vt = seq[n]
            e(f"v_mfma_f32_16x16x32_bf16 {R4(acc)}, {R4(abuf[n&1])}, {R4(Vb(d,vt))}, {R4(acc)}")
        if not early:
            t0()
            issueV(d)
            t1(79)
        e(f"s_add_u32 s{sN}, s{sN}, 1")
        if hst and d == nslot - 1:
            e(f"s_cmpk_lg_u32 s{sN}, {nslot}")
            e("s_cbranch_scc1 L_h2")
            e("s_memrealtime s[88:89]")
            e.label("L_h2")
        if d == nslot - 1:
            e(f"s_and_b32 s{sTmp}, s{sN}, {TPP-1}")
            e("s_cbranch_scc1 L_loop")
            if kpool:
                e(f"s_cmpk_gt_u32 s{sN}, {(P-1)*TPP}")
                e("s_cbranch_scc1 L_loop")
                e("s_branch L_phase")
                e.label("L_final")
                e(f"s_mov_b32 s{sFinal}, 1")
    if nocomp:
        i0 = e.o.index("L_loop:")
        body = e.o[i0:]
        keep = []
        for ln in body:
            t = ln.strip()
            if nocomp == 1 and (t.startswith("v_") or t.startswith("s_nop") or "L_rare" in t or "L_back" in t):
                continue
            if nocomp == 2 and t.startswith("v_mfma"):
                continue
            if nocomp == 3 and (t.startswith("v_") and not t.startswith("v_mfma") or "L_rare" in t or "L_back" in t):
                continue
            keep.append(ln)
        e.o = e.o[:i0] + keep
        if nocomp in (1, 3): rare_blocks.clear()
    assert TPP % nslot == 0
    e.label("L_phase")
    if hst:
        e(f"s_cmpk_lg_u32 s{sN}, {TPP}")
        e("s_cbranch_scc1 L_h3")
        e("s_memrealtime s[90:91]")
        e.label("L_h3")
    if stamp or dbgstamp:
        e("s_memrealtime s[42:43]")
    if phst:
        e("s_waitcnt lgkmcnt(0)")
        e(f"s_mul_i32 s35, s2, {nw}")
        e(f"s_add_u32 s35, s35, s{sWave}")
        e("s_lshl_b32 s35, s35, 6")
        e(f"s_lshr_b32 s{sTmp}, s{sN}, {lgTPP}")
        if kpool:
            e(f"s_cmp_lg_u32 s{sFinal}, 0")
            e(f"s_cselect_b32 s{sTmp}, {P}, s{sTmp}")
        e(f"s_lshl2_add_u32 s35, s{sTmp}, s35")
        e("s_add_u32 s35, s35, 0x90000")
        e("s_mov_b32 s84, s42")
        e(f"v_mov_b32 v{vT0}, s35")
        e(f"v_mov_b32 v{vT1}, s84")
        e("s_mov_b64 exec, 1")
        e(f"global_store_dword v{vT0}, v{vT1}, s[14:15]")
        e("s_mov_b64 exec, -1")
    e(f"v_mov_b32 v{vT0}, v{vL}")
    e("s_nop 1")
    e(f"v_permlane32_swap_b32 v{vL}, v{vT0}")
    e(f"v_add_f32 v{vL}, v{vL}, v{vT0}")
    e(f"v_mov_b32 v{vT0}, v{vL}")
    e("s_nop 1")
    e(f"v_permlane16_swap_b32 v{vL}, v{vT0}")
    e(f"v_add_f32 v{vS+1}, v{vL}, v{vT0}")
    e(f"v_mov_b32 v{vS}, v{vM}")
    e(f"v_mov_b32 v{vT0}, s{sLds}")
    e("s_mov_b32 exec_hi, 0")
    e(f"ds_write_b128 v{vLa0}, {R4(vAcc0)}")
    e("s_mov_b32 exec_lo, 0x00ff00ff")
    e("s_mov_b32 exec_hi, 0xff00ff00")
    e(f"ds_write_b128 v{vLa1}, {R4(vAcc1)}")
    e("s_mov_b64 exec, 1")
    e(f"ds_write_b64 v{vT0}, v[{vS}:{vS+1}] offset:1024")
    if nobar:
        e(f"v_mov_b32 v{vT1}, s{sFlg}")
        e(f"v_mov_b32 v{vT2}, 1")
        e(f"ds_write_b32 v{vT1}, v{vT2}")
        e("s_mov_b64 exec, -1")
    else:
        e("s_mov_b64 exec, -1")
        e("s_waitcnt lgkmcnt(0)")
        e("s_barrier")
    if kpool:
        e(f"s_cmp_lg_u32 s{sFinal}, 0")
    else:
        e(f"s_cmpk_ge_u32 s{sN}, {NTOT}")
    e("s_cbranch_scc1 L_sfin")
    e(f"v_mov_b32 v{vM}, 0xff7fffff")
    e(f"v_mov_b32 v{vMc}, 0xff7fffff")
    e(f"v_mov_b32 v{vL}, 0")
    if nobar:
        e("s_nop 0")
    for r in range(8):
        e(f"v_mov_b32 v{vAcc0+r}, 0")
    if nobar:
        e(f"s_add_u32 s{sLds}, s{sLds}, {NS*LSTRIDE}")
        e(f"s_add_u32 s{sFlg}, s{sFlg}, {NS*4}")
        e(f"v_add_u32 v{vLa0}, {NS*LSTRIDE}, v{vLa0}")
        e(f"v_add_u32 v{vLa1}, {NS*LSTRIDE}, v{vLa1}")
        if kpool:
            e(f"s_cmpk_lg_u32 s{sN}, {(P-1)*TPP}")
            e("s_cbranch_scc1 L_nordy")
            e(f"v_mov_b32 v{vT1}, {FLG0 + 128}")
            if bound: e("s_mov_b32 s50, 1000000")
            e.label("L_srdy")
            if bound:
                e("s_sub_u32 s50, s50, 1")
                e("s_cbranch_scc1 L_nordy")
            e(f"ds_read_b32 v{vT2}, v{vT1}")
            e("s_waitcnt lgkmcnt(0)")
            e(f"v_cmp_eq_u32 vcc, 0, v{vT2}")
            e("s_cbranch_vccz L_nordy")
            e("s_sleep 4")
            e("s_branch L_srdy")
            e.label("L_nordy")
    else:
        e(f"s_lshr_b32 s{sTmp}, s{sN}, {lgTPP}")
        e(f"s_mov_b32 s{sT2}, {(-NS*LSTRIDE) & 0xffffffff}")
        e(f"s_bitcmp1_b32 s{sTmp}, 0")
        e(f"s_cselect_b32 s{sT2}, {NS*LSTRIDE}, s{sT2}")
        e(f"s_add_u32 s{sLds}, s{sLds}, s{sT2}")
        e(f"v_add_u32 v{vLa0}, s{sT2}, v{vLa0}")
        e(f"v_add_u32 v{vLa1}, s{sT2}, v{vLa1}")
    for r in range(12):
        e(f"v_mov_b32 v{vQ1+r}, v{vQs+r}")
    for p in range(1, P-1):
        for r in range(12):
            e(f"v_mov_b32 v{vQs+12*(p-1)+r}, v{vQs+12*p+r}")
    e("s_branch L_loop")
    e.label("L_sfin")
    if hst:
        e("s_memrealtime s[92:93]")
        e("s_waitcnt lgkmcnt(0)")
        e("s_mov_b64 exec, 1")
        e("v_mov_b32 v52, 0")
        for idx, sreg, inv in ((0, 40, 1), (1, 40, 0), (2, 86, 0), (11, 86, 1), (3, 88, 0), (12, 88, 1), (4, 90, 0), (5, 90, 1), (6, 92, 0), (7, 92, 1)):
            if inv:
                e(f"s_not_b32 s94, s{sreg}")
                e("v_mov_b32 v53, s94")
            else:
                e(f"v_mov_b32 v53, s{sreg}")
            e(f"global_atomic_umax v52, v53, s[12:13] offset:{idx*4}")
            e("s_nop 1")
        e("s_endpgm")
    if prof:
        e("s_memtime s[82:83]")
        e("s_waitcnt lgkmcnt(0)")
        e("s_sub_u32 s82, s82, s80")
        e("s_mov_b64 exec, 1")
        e(f"s_mul_i32 s35, s2, {nw}")
        e(f"s_add_u32 s35, s35, s{sWave}")
        e("s_lshl_b32 s35, s35, 5")
        e("s_add_u32 s35, s35, 0x80000")
        e("v_mov_b32 v20, s72")
        e("v_mov_b32 v21, s73")
        e("v_mov_b32 v22, s78")
        e("v_mov_b32 v23, s79")
        e("v_mov_b32 v24, s82")
        e("v_mov_b32 v26, s35")
        e("global_store_dwordx4 v26, v[20:23], s[14:15]")
        e("global_store_dword v26, v24, s[14:15] offset:16")
        e("s_mov_b64 exec, -1")
    if stamp:
        e("s_waitcnt vmcnt(0)")
        e("s_branch L_stamp")
    e("s_endpgm")
    e.label("L_service")
    if nobar:
        e(f"v_lshlrev_b32 v{vT1}, 2, v{vLane}")
        e(f"v_mov_b32 v{vT2}, 0")
        e(f"ds_write_b32 v{vT1}, v{vT2} offset:{FLG0}")
        e("s_waitcnt lgkmcnt(0)")
        e("s_barrier")
    if codepf:
        e("s_getpc_b64 s[48:49]")
        e.label("L_pc")
        e(f"s_sub_u32 s48, s48, L_pc-{KNAME}")
        e("s_subb_u32 s49, s49, 0")
        e(f"v_lshlrev_b32 v{vT1}, 7, v{vLane}")
        e(f"v_min_u32 v{vT1}, L_end-{KNAME}, v{vT1}")
        e(f"global_load_dword v{vS}, v{vT1}, s[48:49]")
    e("s_waitcnt lgkmcnt(0)")
    e(f"s_mul_i32 s{sTmp}, s{sH0}, {NG*SLOTSZ}")
    e(f"s_add_u32 s{sTmp}, s{sTmp}, {SLOT0}")
    e(f"s_add_u32 s{sSlot}, s14, s{sTmp}")
    e(f"s_addc_u32 s{sSlot+1}, s15, 0")
    e(f"v_lshlrev_b32 v{vT0}, 4, v{vLane}")
    e(f"s_bitcmp1_b32 s{sMb}, 0")
    e("s_cbranch_scc1 L_noclear")
    e(f"s_lshr_b32 s{sTmp}, s{sMb}, 1")
    e(f"s_mul_i32 s{sT2}, s{sTmp}, {NG*SLOTSZ}")
    e(f"s_add_u32 s{sT2}, s{sSlot}, s{sT2}")
    e(f"s_addc_u32 s{sT2+1}, s{sSlot+1}, 0")
    for r in range(4):
        e(f"v_mov_b32 v{vX0+r}, -1" if False else f"v_mov_b32 v{16+r}, -1")
    e(f"v_mov_b32 v{vT1}, v{vT0}")
    if clrmode == 2:
        for _ in range(4): e("s_sleep 127")
    for p in range(NG):
        if clrmode == 1: continue
        if clrmode == 3:
            e(f"global_store_dwordx4 v{vT1}, v[16:19], s[{sT2}:{sT2+1}]")
            if p + 1 < NG: e(f"v_add_u32 v{vT1}, {SLOTSZ}, v{vT1}")
            continue
        if clrmode == 4 and p > 0: continue
        if clrmode == 5:
            if p == 0: e(f"global_load_dwordx4 v[20:23], v{vT1}, s[{sT2}:{sT2+1}] {sc}")
            continue
        if clrmode == 6:
            if p == 0:
                e(f"v_mov_b32 v20, 240")
                e(f"global_store_dword v20, v16, s[12:13] {sc}")
            continue
        if clrmode == 7:
            if p == 0:
                for _ in range(1): e("s_sleep 100")
                e(f"global_store_dwordx4 v{vT1}, v[16:19], s[{sT2}:{sT2+1}] {sc}")
            continue
        e(f"global_store_dwordx4 v{vT1}, v[16:19], s[{sT2}:{sT2+1}] {sc}")
        if p + 1 < NG:
            e(f"v_add_u32 v{vT1}, {SLOTSZ}, v{vT1}")
    if kpool:
        e(f"s_cmp_lg_u32 s{sMb}, 0")
        e("s_cbranch_scc1 L_noctr")
        e(f"s_mul_i32 s{sT2}, s{sGrp}, {256*nctr}")
        e(f"s_add_u32 s{sT2}, s{sT2}, {CTR0}")
        e(f"v_lshlrev_b32 v{vT1}, 8, v{vLane}")
        e(f"v_add_u32 v{vT1}, s{sT2}, v{vT1}")
        e(f"v_mov_b32 v{vT2}, 0")
        e(f"s_mov_b64 exec, {(1 << nctr) - 1}")
        e(f"global_store_dword v{vT1}, v{vT2}, s[14:15] {sc}")
        e("s_mov_b64 exec, -1")
        e.label("L_noctr")
    e(f"s_add_u32 s{sTmp}, s{sTmp}, s{sH0}")
    e(f"v_mov_b32 v{vT1}, s{sTmp}")
    e(f"v_mov_b32 v{vT2}, 1")
    e("s_waitcnt vmcnt(0)")
    e("s_mov_b64 exec, 1")
    e(f"global_store_byte v{vT1}, v{vT2}, s[12:13] offset:128 {sc}")
    e("s_mov_b64 exec, -1")
    e.label("L_noclear")
    e("s_waitcnt vmcnt(0)")
    e(f"s_mov_b32 s51, 0")
    e(f"s_mov_b32 s{sN}, 0")
    e(f"s_mov_b32 s{sLds}, 0")
    sDry = 57
    vKeep = 16
    vX = 72
    if warm:
        e(f"s_mov_b32 s{sDry}, 1")
        e("s_branch L_pub")
    e.label("L_sphase")
    if nobar:
        e(f"s_mul_i32 s{sTmp}, s{sN}, {NS*4}")
        e(f"s_add_u32 s{sTmp}, s{sTmp}, {FLG0}")
        e(f"v_and_b32 v{vT1}, {NS-1}, v{vLane}")
        e(f"v_lshl_add_u32 v{vT1}, v{vT1}, 2, s{sTmp}")
        if bound: e("s_mov_b32 s50, 1000000")
        e.label("L_swait")
        if bound:
            e("s_sub_u32 s50, s50, 1")
            e("s_cbranch_scc1 L_sgo")
        e(f"ds_read_b32 v{vT2}, v{vT1}")
        e("s_waitcnt lgkmcnt(0)")
        e(f"v_cmp_eq_u32 vcc, 0, v{vT2}")
        e("s_cbranch_vccz L_sgo")
        e(f"s_cmp_eq_u32 s{sN}, {P-1}")
        e("s_cbranch_scc1 L_swait")
        e("s_sleep 8")
        e("s_branch L_swait")
        e.label("L_sgo")
    else:
        e("s_barrier")
    e(f"v_add_u32 v{vT1}, s{sLds}, v{vT0}")
    e(f"v_mov_b32 v{vT2}, s{sLds}")
    for w in range(NS):
        e(f"ds_read_b128 {R4(vX+12*w)}, v{vT1} offset:{w*LSTRIDE}")
        e(f"ds_read_b128 {R4(vX+12*w+4)}, v{vT1} offset:{w*LSTRIDE+256}")
        e(f"ds_read_b64 v[{vX+12*w+8}:{vX+12*w+9}], v{vT2} offset:{w*LSTRIDE+1024}")
    e(f"v_cmp_le_u32 vcc, 32, v{vLane}")
    if nobar:
        e(f"s_add_u32 s{sLds}, s{sLds}, {NS*LSTRIDE}")
    else:
        e(f"s_xor_b32 s{sLds}, s{sLds}, {NS*LSTRIDE}")
    for i in range(P-1, 0, -1):
        for r in range(4):
            e(f"v_mov_b32 v{vKeep+4*i+r}, v{vKeep+4*(i-1)+r}")
    e("s_waitcnt lgkmcnt(0)")
    e(f"v_mov_b32 v{vM}, v{vX+8}")
    for w in range(1, NS):
        e(f"v_max_f32 v{vM}, v{vM}, v{vX+12*w+8}")
    e(f"v_mul_f32 v{vMc}, s{sC}, v{vM}")
    for w in range(NS):
        b = vX + 12*w
        e(f"v_fma_f32 v{vT2}, v{b+8}, s{sC}, -v{vMc}")
        e(f"v_exp_f32 v{vT2}, v{vT2}")
        for r in range(4):
            e(f"v_cndmask_b32 v{b+4+r}, 0, v{b+4+r}, vcc")
        for r in range(4):
            e(f"v_add_f32 v{b+r}, v{b+r}, v{b+4+r}")
        if w == 0:
            e(f"v_mul_f32 v{vL}, v{vT2}, v{b+9}")
            for r in range(4):
                e(f"v_mul_f32 v{vKeep+r}, v{vT2}, v{b+r}")
        else:
            e(f"v_fma_f32 v{vL}, v{vT2}, v{b+9}, v{vL}")
            for r in range(4):
                e(f"v_fma_f32 v{vKeep+r}, v{vT2}, v{b+r}, v{vKeep+r}")
    e("s_mov_b32 exec_lo, 0")
    e("s_mov_b32 exec_hi, 0x10000")
    e(f"v_mov_b32 v{vKeep}, v{vM}")
    e(f"v_mov_b32 v{vKeep+1}, v{vL}")
    e(f"v_mov_b32 v{vKeep+2}, v{vM}")
    e(f"v_mov_b32 v{vKeep+3}, v{vL}")
    e("s_mov_b64 exec, -1")
    e(f"s_add_u32 s{sN}, s{sN}, 1")
    e(f"s_cmp_ge_u32 s{sN}, {P}")
    e("s_cbranch_scc1 L_pub0")
    e("s_cmp_lg_u32 s51, 0")
    e("s_cbranch_scc1 L_sphase")
    e(f"v_and_b32 v{vT1}, {P-1}, v{vLane}")
    e(f"v_add_u32 v{vT1}, s{sH0}, v{vT1}")
    if bound: e("s_mov_b32 s50, 20000")
    e.label("L_rdy")
    if bound:
        e("s_sub_u32 s50, s50, 1")
        e("s_cbranch_scc1 L_rdy_set")
    e(f"global_load_ubyte v{vT2}, v{vT1}, s[12:13] offset:128 {sc}")
    e("s_waitcnt vmcnt(0)")
    e(f"v_cmp_eq_u32 vcc, 0, v{vT2}")
    e("s_cbranch_vccz L_rdy_set")
    e("s_sleep 8")
    e("s_branch L_rdy")
    e.label("L_rdy_set")
    e("s_mov_b32 s51, 1")
    if nobar:
        e(f"v_mov_b32 v{vT1}, {FLG0 + 128}")
        e(f"v_mov_b32 v{vT2}, 1")
        e(f"ds_write_b32 v{vT1}, v{vT2}")
    e("s_branch L_sphase")
    e.label("L_pub0")
    if hst:
        e("s_memrealtime s[88:89]")
    if phst:
        e("s_memrealtime s[84:85]")
    e(f"s_mov_b32 s{sDry}, 0")
    e.label("L_pub")
    e(f"s_lshl_b32 s{sTmp}, s{sMb}, 10")
    e(f"v_add_u32 v{vT1}, s{sTmp}, v{vT0}")
    e(f"s_add_u32 s{sT2}, s{sSlot}, {(P-1)*NG*SLOTSZ}")
    e(f"s_addc_u32 s{sT2+1}, s{sSlot+1}, 0")
    e("s_mov_b32 exec_hi, 0x1ffff")
    for i in range(P):
        if warm:
            e(f"s_cmp_lg_u32 s{sDry}, 0")
            e(f"s_cbranch_scc1 L_pskip{i}")
        if not nopub:
            e(f"global_store_dwordx4 v{vT1}, {R4(vKeep+4*i)}, s[{sT2}:{sT2+1}] {sc}")
        if warm:
            e.label(f"L_pskip{i}")
        if i + 1 < P:
            e(f"s_sub_u32 s{sT2}, s{sT2}, {NG*SLOTSZ}")
            e(f"s_subb_u32 s{sT2+1}, s{sT2+1}, 0")
    e("s_mov_b64 exec, -1")
    if phst:
        e("s_memrealtime s[86:87]")
    e(f"s_bitcmp1_b32 s{sMb}, 0")
    e("s_cbranch_scc1 L_sdone")
    e(f"s_lshr_b32 s{sN}, s{sMb}, 1")
    e(f"s_mul_i32 s{sTmp}, s{sN}, {NG*SLOTSZ}")
    e(f"s_add_u32 s{sTmp+0}, s{sTmp}, 0")
    sSC = 58 + 8
    e(f"s_add_u32 s{sSC}, s{sSlot}, s{sTmp}")
    e(f"s_addc_u32 s{sSC+1}, s{sSlot+1}, 0")
    e(f"v_and_b32 v{vT1}, {NG-1}, v{vLane}")
    e(f"v_lshlrev_b32 v{vT1}, 10, v{vT1}")
    e(f"v_min_u32 v{vT2}, 768, v{vT0}")
    if warm:
        e(f"s_cmp_lg_u32 s{sDry}, 0")
        e("s_cbranch_scc0 L_poll")
        e(f"v_mov_b32 v{vT1}, 0")
        e(f"v_mov_b32 v{vT2}, 0")
    if bound: e("s_mov_b32 s50, 20000")
    e.label("L_poll")
    if bound:
        e("s_sub_u32 s50, s50, 1")
        e("s_cbranch_scc1 L_sdone")
    if not fastpoll:
        e(f"global_load_dwordx2 v[{vS}:{vS+1}], v{vT1}, s[{sSC}:{sSC+1}] offset:768 {sc}")
        e("s_waitcnt vmcnt(0)")
        e(f"v_max_u32 v{vL}, v{vS}, v{vS+1}")
        e(f"v_cmp_eq_u32 vcc, -1, v{vL}")
        e("s_cbranch_vccz L_poll2")
        if warm:
            e(f"s_cmp_lg_u32 s{sDry}, 0")
            e("s_cbranch_scc1 L_poll2")
        e(f"s_sleep {pollsleep}")
        e("s_branch L_poll")
    e.label("L_poll2")
    if phst:
        e("s_memrealtime s[88:89]")
    if bound:
        e("s_sub_u32 s50, s50, 1")
        e("s_cbranch_scc1 L_sdone")
    if fastpoll:
        e(f"global_load_dwordx2 v[{vS}:{vS+1}], v{vT1}, s[{sSC}:{sSC+1}] offset:768 {sc}")
    e(f"s_mov_b64 s[{sT2}:{sT2+1}], s[{sSC}:{sSC+1}]")
    for p in range(NG):
        e(f"global_load_dwordx4 {R4(vX+4*p)}, v{vT2}, s[{sT2}:{sT2+1}] offset:{(p%4)*SLOTSZ} {sc}")
        if p % 4 == 3 and p + 1 < NG:
            e(f"s_add_u32 s{sT2}, s{sT2}, {4*SLOTSZ}")
            e(f"s_addc_u32 s{sT2+1}, s{sT2+1}, 0")
    e("s_waitcnt vmcnt(0)")
    if fastpoll:
        e(f"v_max_u32 v{vL}, v{vS}, v{vS+1}")
    else:
        e(f"v_mov_b32 v{vL}, 0")
    for p in range(NG):
        e(f"v_max3_u32 v{vL}, v{vX+4*p}, v{vX+4*p+1}, v{vL}")
        e(f"v_max3_u32 v{vL}, v{vX+4*p+2}, v{vX+4*p+3}, v{vL}")
    e(f"v_cmp_eq_u32 vcc, -1, v{vL}")
    if warm:
        e("s_cbranch_vccz L_comb")
        e(f"s_cmp_lg_u32 s{sDry}, 0")
        e("s_cbranch_scc0 L_poll2")
        e.label("L_comb")
    else:
        e("s_cbranch_vccnz L_poll2")
    if phst:
        e("s_memrealtime s[90:91]")
    ror = lambda n: f"row_ror:{n} row_mask:0xf bank_mask:0xf"
    steps = [8, 4, 2, 1] if NG == 16 else [4, 2, 1]
    e(f"v_mov_b32 v{vM}, v{vS}")
    e("s_nop 1")
    for n in steps:
        e(f"v_max_f32_dpp v{vM}, v{vM}, v{vM} {ror(n)}")
        e("s_nop 1")
    e(f"v_mul_f32 v{vMc}, s{sC}, v{vM}")
    e(f"v_fma_f32 v{vP}, v{vS}, s{sC}, -v{vMc}")
    e(f"v_exp_f32 v{vP}, v{vP}")
    e("s_nop 0")
    e(f"v_mul_f32 v{vL}, v{vP}, v{vS+1}")
    e("s_nop 1")
    for n in steps:
        e(f"v_add_f32_dpp v{vL}, v{vL}, v{vL} {ror(n)}")
        e("s_nop 1")
    e(f"v_rcp_f32 v{vL}, v{vL}")
    e("s_nop 0")
    e(f"v_mul_f32 v{vP}, v{vP}, v{vL}")
    e("s_nop 0")
    for p in range(NG):
        e(f"v_readlane_b32 s{68+p}, v{vP}, {p}")
    e("s_nop 1")
    for r in range(4):
        e(f"v_mul_f32 v{vAcc0+r+12}, s68, v{vX+r}")
    for p in range(1, NG):
        for r in range(4):
            e(f"v_fma_f32 v{vAcc0+r+12}, s{68+p}, v{vX+4*p+r}, v{vAcc0+r+12}")
    e(f"v_cvt_pk_bf16_f32 v{vS}, v{vAcc0+12}, v{vAcc0+13}")
    e(f"v_cvt_pk_bf16_f32 v{vS+1}, v{vAcc0+14}, v{vAcc0+15}")
    e(f"s_add_u32 s{sTmp}, s{sH0}, s{sN}")
    e(f"s_mul_i32 s{sTmp}, s{sTmp}, 384")
    e(f"v_lshlrev_b32 v{vT1}, 3, v{vLane}")
    e(f"v_add_u32 v{vT1}, s{sTmp}, v{vT1}")
    if warm:
        e(f"s_cmp_lg_u32 s{sDry}, 0")
        e("s_cbranch_scc1 L_sdone")
    e("s_mov_b32 exec_hi, 0xffff")
    e(f"global_store_dwordx2 v{vT1}, v[{vS}:{vS+1}], s[10:11]")
    e("s_mov_b64 exec, -1")
    e.label("L_sdone")
    if phst:
        e("s_memrealtime s[92:93]")
        e("s_waitcnt vmcnt(0) lgkmcnt(0)")
        e("s_memrealtime s[94:95]")
        e("s_waitcnt lgkmcnt(0)")
        e(f"s_mul_i32 s35, s2, {nw}")
        e(f"s_add_u32 s35, s35, s{sWave}")
        e("s_lshl_b32 s35, s35, 6")
        e("s_add_u32 s35, s35, 0x90000")
        for i in range(6):
            e(f"v_mov_b32 v{100+i}, s{84+2*i}")
        e(f"v_mov_b32 v99, s35")
        e("s_mov_b64 exec, 1")
        e("global_store_dwordx4 v99, v[100:103], s[14:15]")
        e("global_store_dwordx2 v99, v[104:105], s[14:15] offset:16")
        e("s_mov_b64 exec, -1")
    if warm:
        e(f"s_cmp_eq_u32 s{sDry}, 0")
        e("s_cbranch_scc1 L_sexit")
        e(f"s_mov_b32 s{sN}, 0")
        if hst:
            e("s_memrealtime s[86:87]")
        e("s_branch L_sphase")
        e.label("L_sexit")
    if hst:
        e("s_waitcnt vmcnt(0)")
        e("s_memrealtime s[90:91]")
        e("s_waitcnt lgkmcnt(0)")
        e("s_mov_b64 exec, 1")
        e("v_mov_b32 v52, 0")
        for idx, sreg in ((8, 86), (9, 88), (10, 90)):
            e(f"v_mov_b32 v53, s{sreg}")
            e(f"global_atomic_umax v52, v53, s[12:13] offset:{idx*4}")
            e("s_nop 1")
    if dbgstamp:
        e("s_waitcnt vmcnt(0)")
        e("s_memrealtime s[44:45]")
        e("s_waitcnt lgkmcnt(0)")
        e("s_mov_b64 exec, 1")
        e("s_not_b32 s40, s40")
        e("v_mov_b32 v20, s40")
        e("v_mov_b32 v21, s44")
        e("v_mov_b32 v22, 16")
        e("global_atomic_umax v22, v20, s[12:13]")
        e("global_atomic_umax v22, v21, s[12:13] offset:4")
    if stamp:
        e("s_waitcnt vmcnt(0)")
        e("s_memrealtime s[42:43]")
        e.label("L_stamp")
        e("s_mov_b64 exec, -1")
        e("s_memrealtime s[44:45]")
        e("s_getreg_b32 s46, hwreg(HW_REG_XCC_ID)")
        e("s_getreg_b32 s47, hwreg(HW_REG_HW_ID)")
        e("s_waitcnt lgkmcnt(0)")
        e(f"s_mul_i32 s35, s2, {nw}")
        e(f"s_add_u32 s35, s35, s{sWave}")
        e("s_lshl_b32 s35, s35, 5")
        e("v_mov_b32 v20, s40")
        e("v_mov_b32 v21, s41")
        e("v_mov_b32 v22, s44")
        e("v_mov_b32 v23, s45")
        e("v_mov_b32 v24, s46")
        e("v_mov_b32 v25, s42")
        e("v_mov_b32 v26, s35")
        e("v_mov_b32 v28, s47")
        e("s_mov_b64 exec, 1")
        e("global_store_dwordx4 v26, v[20:23], s[14:15]")
        e("global_store_dwordx2 v26, v[24:25], s[14:15] offset:16")
        e("global_store_dword v26, v28, s[14:15] offset:24")
    e("s_endpgm")
    for tag, d in dyn_blocks:
        e.label(f"L_dyn_{tag}")
        e("s_waitcnt lgkmcnt(0)")
        e(f"s_cmpk_lt_u32 s{sRaw}, {POOL // nctr}")
        e(f"s_cselect_b32 s{sVal+d}, 1, 0")
        e(f"s_cselect_b32 s{sK+2}, s{sTens}, 0")
        e(f"s_cselect_b32 s{sV+2}, s{sTens}, 0")
        e(f"s_mul_i32 s{sOff}, s{sRaw}, {TILE * nctr}")
        e(f"s_add_u32 s{sOff}, s{sOff}, s{sPoolB}")
        e(f"s_branch L_issue_{tag}")
        e.label(f"L_claim_{tag}")
        e(f"s_cmp_eq_u32 s{sVal+d}, 0")
        e(f"s_cbranch_scc1 L_claimed_{tag}")
        e(f"s_mov_b32 s{sRaw}, 1")
        e(f"s_atomic_add s{sRaw}, s[{sCtr}:{sCtr+1}], 0 glc")
        e(f"s_branch L_claimed_{tag}")
    for tag in rare_blocks:
        e.label(f"L_rare_{tag}")
        e(f"v_mov_b32 v{vT1}, v{vT0}")
        e("s_nop 1")
        e(f"v_permlane32_swap_b32 v{vT0}, v{vT1}")
        e(f"v_max_f32 v{vT0}, v{vT0}, v{vT1}")
        e(f"v_mov_b32 v{vT1}, v{vT0}")
        e("s_nop 1")
        e(f"v_permlane16_swap_b32 v{vT0}, v{vT1}")
        e(f"v_max_f32 v{vT0}, v{vT0}, v{vT1}")
        e(f"v_max_f32 v{vM}, v{vM}, v{vT0}")
        e(f"v_mul_f32 v{vT1}, s{sC}, v{vM}")
        e(f"v_sub_f32 v{vT0}, v{vMc}, v{vT1}")
        e(f"v_exp_f32 v{vT0}, v{vT0}")
        e(f"v_mov_b32 v{vMc}, v{vT1}")
        for r in range(8):
            e(f"v_mul_f32 v{vAcc0+r}, v{vT0}, v{vAcc0+r}")
        e(f"v_mul_f32 v{vL}, v{vT0}, v{vL}")
        e(f"s_branch L_back_{tag}")
    e.label("L_end")
    e("s_endpgm")
    e.o = [x for x in e.o if x is not None]
    e.o.append('.section .rodata,"a"')
    e.o.append(".p2align 6")
    e.o.append(f".amdhsa_kernel {KNAME}")
    e.o.append(f"  .amdhsa_next_free_vgpr {nvgpr}")
    e.o.append("  .amdhsa_next_free_sgpr 100")
    e.o.append(f"  .amdhsa_accum_offset {(nvgpr+3)//4*4}")
    e.o.append("  .amdhsa_group_segment_fixed_size 0")
    e.o.append("  .amdhsa_kernarg_size 48")
    e.o.append("  .amdhsa_user_sgpr_count 2")
    e.o.append("  .amdhsa_user_sgpr_kernarg_segment_ptr 1")
    e.o.append("  .amdhsa_system_sgpr_workgroup_id_x 1")
    e.o.append(".end_amdhsa_kernel")
    return HEADER + e.text()

if __name__ == "__main__":
    import argparse
    ap = argparse.ArgumentParser()
    ap.add_argument("-o", default="/dev/stdout")
    ap.add_argument("--depth", type=int, default=1)
    ap.add_argument("--ng", type=int, default=8)
    ap.add_argument("--ns", type=int, default=2)
    ap.add_argument("--pol", default="nt")
    ap.add_argument("--stamp", action="store_true")
    ap.add_argument("--dbgstamp", action="store_true")
    ap.add_argument("--nocodepf", action="store_true")
    ap.add_argument("--bound", action="store_true")
    ap.add_argument("--prof", action="store_true")
    ap.add_argument("--nobal", action="store_true")
    ap.add_argument("--phst", action="store_true")
    ap.add_argument("--sc", default="sc1")
    ap.add_argument("--clrmode", type=int, default=0)
    ap.add_argument("--kpool", type=int, default=0)
    ap.add_argument("--early", action="store_true")
    ap.add_argument("--nocomp", type=int, default=0)
    ap.add_argument("--nopub", type=int, default=0)
    ap.add_argument("--warm", action="store_true")
    ap.add_argument("--nctr", type=int, default=1)
    ap.add_argument("--fastpoll", action="store_true")
    ap.add_argument("--st0", action="store_true")
    ap.add_argument("--bar", action="store_true")
    ap.add_argument("--hst", action="store_true")
    a = ap.parse_args()
    open(a.o, "w").write(gen(NG=a.ng, NS=a.ns, depth=a.depth, pol=a.pol, stamp=a.stamp, dbgstamp=a.dbgstamp, codepf=not a.nocodepf, bound=a.bound, prof=a.prof, bal=not a.nobal, phst=a.phst, sc=a.sc, clrmode=a.clrmode, kpool=a.kpool, early=a.early, nocomp=a.nocomp, nopub=a.nopub, warm=a.warm, nctr=a.nctr, fastpoll=a.fastpoll, st0=a.st0, nobar=not a.bar, hst=a.hst))
```
